```python
import torch

def _softmax(x, axis=-1):
    return torch.softmax(x, dim=axis)
def _gelu(x):
    return torch.nn.functional.gelu(x, approximate="tanh")
def _silu(x):
    return torch.nn.functional.silu(x)
def _sigmoid(x):
    return torch.sigmoid(x)
def _layernorm(x, axis=-1, eps=1e-5):
    m = x.mean(dim=axis, keepdim=True)
    v = x.var(dim=axis, keepdim=True, unbiased=False)
    return (x - m) / torch.sqrt(v + eps)
def _scatter_add(tgt, idx, src, axis=0):
    return tgt.clone().index_add_(axis, idx, src)
def _segment_sum(src, seg, n):
    out = torch.zeros((n,) + src.shape[1:], dtype=src.dtype)
    return out.index_add_(0, seg, src)
def _pad(x, pw):
    flat = tuple(v for pair in reversed(pw) for v in pair)
    return torch.nn.functional.pad(x, flat)

kernel_name = 'sequential_preLN__spectral_gfnet__mixer_s_mlp__prompt'

def setup_inputs():

    _w = (lambda a: (lambda t: t.to(torch.bfloat16) if t.is_floating_point() else t)(torch.as_tensor(a)))
    def _A_setup():
        B, S, D = 1, 2048, 576
        Df = D // 2 + 1
        return {
            "x": _w((lambda *s: torch.randn(*s, dtype=torch.bfloat16) * 0.05)(B, S, D)),
            "w_r": _w((lambda *s: torch.randn(*s, dtype=torch.bfloat16) * 0.4)(S, Df) * 0.02),
            "w_i": _w((lambda *s: torch.randn(*s, dtype=torch.bfloat16) * 0.4)(S, Df) * 0.02),
        }
    _A_in = _A_setup()

    def _B_setup():
        B, S, D, F = 1, 2048, 576, 4608
        return {
            "x":  _w((lambda *s: torch.randn(*s, dtype=torch.bfloat16) * 0.05)(B, S, D)),
            "w1": _w((lambda *s: torch.randn(*s, dtype=torch.bfloat16) * 0.8)(D, D) * (D ** -0.5)),
            "w2": _w((lambda *s: torch.randn(*s, dtype=torch.bfloat16) * 0.8)(D, D) * (D ** -0.5)),
            "w3": _w((lambda *s: torch.randn(*s, dtype=torch.bfloat16) * 0.8)(D, F) * (D ** -0.5)),
            "w4": _w((lambda *s: torch.randn(*s, dtype=torch.bfloat16) * 0.8)(F, D) * (F ** -0.5)),
        }
    _B_in = _B_setup()

    return {
        "A_x": _A_in["x"],
        "A_w_r": _A_in["w_r"],
        "A_w_i": _A_in["w_i"],
        "B_x": _B_in["x"],
        "B_w1": _B_in["w1"],
        "B_w2": _B_in["w2"],
        "B_w3": _B_in["w3"],
        "B_w4": _B_in["w4"],
    }

def reference(A_x, A_w_r, A_w_i, B_x, B_w1, B_w2, B_w3, B_w4):
    def _A_ref(x, w_r, w_i):
        B, S, D = x.shape
        X = (lambda x, axes=(-2,-1): torch.fft.rfft2(x.float(), dim=axes))(x, axes=(-2, -1))
        W = w_r + 1j * w_i
        X = X * W
        y = (lambda x, s, axes=(-2,-1): torch.fft.irfft2(x, s=s, dim=axes).to(torch.bfloat16))(X, (S, D), axes=(-2, -1))
        return y

    def _B_ref(x, w1, w2, w3, w4):
        B, S, D = x.shape
        h = _gelu(_layernorm(x, axis=-1) @ w1)
        c = D // 4
        g0 = _pad(h[:, :, 0*c:1*c], ((0, 0), (1, 0), (0, 0)))[:, :S, :]
        g1 = _pad(h[:, :, 1*c:2*c], ((0, 0), (0, 1), (0, 0)))[:, 1:, :]
        g2 = _pad(h[:, :, 2*c:3*c], ((0, 0), (2, 0), (0, 0)))[:, :S, :]
        g3 = _pad(h[:, :, 3*c:   ], ((0, 0), (0, 2), (0, 0)))[:, 2:, :]
        hs = torch.concatenate([g0, g1, g2, g3], axis=-1) @ w2
        x1 = x + hs
        h2 = _gelu(_layernorm(x1, axis=-1) @ w3) @ w4
        return x1 + h2

    x = A_x
    h = x + _A_ref(_layernorm(x, axis=-1), A_w_r, A_w_i)
    h2 = h + _B_ref(_layernorm(h, axis=-1), B_w1, B_w2, B_w3, B_w4)
    return h2
```

```python
import re, struct

def f2u(x):
    return struct.unpack('<I', struct.pack('<f', x))[0]
def fhex(x):
    return '0x%08x' % f2u(x)

TRANS = ('v_exp_f32','v_log_f32','v_rcp_f32','v_rsq_f32','v_sqrt_f32','v_sin_f32','v_cos_f32')

_reg_re = re.compile(r'^(-|\|)?(abs\()?([vsa])(\d+|\[(\d+):(\d+)\])\)?\|?$')

def regs_of(tok):
    tok = tok.strip()
    if tok in ('vcc','exec','m0','vcc_lo','vcc_hi','exec_lo','exec_hi'):
        return {('x', tok.split('_')[0])}
    m = _reg_re.match(tok)
    if not m: return set()
    k = m.group(3)
    if m.group(5) is not None:
        return {(k, i) for i in range(int(m.group(5)), int(m.group(6))+1)}
    return {(k, int(m.group(4)))}

class Inst:
    __slots__=('text','op','ops','mods','dst','src','kind','passes','srcC','srcAB','states')
    def __init__(self, text):
        self.text = text
        t = text.split(';')[0].strip()
        parts = t.split(None, 1)
        self.op = parts[0]
        rest = parts[1] if len(parts) > 1 else ''
        toks=[]; cur=''; depth=0
        for ch in rest:
            if ch in '[(': depth+=1
            if ch in '])': depth-=1
            if ch==',' and depth==0: toks.append(cur.strip()); cur=''
            else: cur+=ch
        if cur.strip(): toks.append(cur.strip())
        mods=''
        if toks:
            l = toks[-1].split(None,1)
            toks[-1]=l[0]
            if len(l)>1: mods=l[1]
        self.ops=toks; self.mods=mods
        self.classify()
    def classify(self):
        op=self.op; o=self.ops
        self.dst=set(); self.src=set(); self.passes=0; self.srcC=set(); self.srcAB=set(); self.states=1
        R=lambda i: regs_of(o[i]) if i < len(o) else set()
        allr=lambda a: set().union(*[R(i) for i in range(a,len(o))]) if len(o)>a else set()
        if op.startswith('v_mfma'):
            self.kind='mfma'; self.dst=R(0); self.srcAB=R(1)|R(2); self.srcC=R(3); self.src=self.srcAB|self.srcC
            self.passes = 8 if '32x32x16' in op else 4 if '16x16x32' in op else None
            assert self.passes, op
        elif op.startswith('v_'):
            base=op.replace('_e32','').replace('_e64','').replace('_dpp','').replace('_sdwa','')
            self.kind='trans' if base in TRANS else 'dot' if base.startswith('v_dot') else 'valu'
            if base.startswith('v_cmp'):
                assert not base.startswith('v_cmpx')
                self.dst=R(0); self.src=allr(1)
            elif base.startswith('v_permlane') and 'swap' in base:
                self.kind='perml'; self.dst=R(0)|R(1); self.src=R(0)|R(1)
            elif base in ('v_readfirstlane_b32','v_readlane_b32'):
                self.kind='rdlane'; self.dst=R(0); self.src=allr(1)
            elif base in ('v_add_co_u32','v_sub_co_u32','v_addc_co_u32','v_subb_co_u32','v_mad_u64_u32'):
                self.dst=R(0)|R(1); self.src=allr(2)
            else:
                self.dst=R(0); self.src=allr(1)
                if base in ('v_fmac_f32','v_dot2c_f32_bf16','v_pk_fmac_f16','v_writelane_b32'): self.src|=R(0)
                if base=='v_cndmask_b32' and len(o)==3: self.src|={('x','vcc')}
            if '_dpp' in op or 'row_' in self.mods or 'quad_perm' in self.mods:
                self.kind='dpp'; self.src|=R(0)
        elif op.startswith('buffer_') or op.startswith('global_'):
            self.kind='vmem'
            if 'lds' in self.mods.split() or (o and o[-1]=='lds') :
                self.src=allr(0)|{('x','m0')}; self.kind='dma'
            elif '_load' in op:
                self.dst=R(0); self.src=allr(1)
            else:
                self.src=allr(0)
                if op.endswith('x4') or op.endswith('x3'): self.kind='wstore'
        elif op.startswith('ds_'):
            self.kind='ds'
            if op.startswith('ds_read') or op.startswith('ds_bpermute') or op.startswith('ds_swizzle') or op.startswith('ds_permute'):
                self.dst=R(0); self.src=allr(1)
            else:
                self.src=allr(0)
        elif op=='s_nop':
            self.kind='nop'; self.states=int(o[0],0)+1
        elif op.startswith('s_'):
            self.kind='salu'
            if op.startswith(('s_cmp','s_cbranch','s_branch','s_waitcnt','s_barrier','s_endpgm','s_setprio','s_sleep','s_bitcmp')):
                self.src=allr(0)
            else:
                self.dst=R(0); self.src=allr(1)
                if 'saveexec' in op: self.dst|={('x','exec')}
        else:
            raise ValueError('unknown op '+self.text)

VALUK=('valu','trans','dot','perml','rdlane','dpp')
def need(p, c):
    n=0
    pv = p.kind in VALUK
    cv = c.kind in VALUK
    vdst = {r for r in p.dst if r[0] in 'va'}
    sdst = {r for r in p.dst if r[0] in 'sx'}
    if pv:
        if c.kind=='mfma' and vdst & c.src: n=max(n,3 if p.kind=='dot' else 2)
        if p.kind=='trans' and cv and c.kind!='trans' and vdst & c.src: n=max(n,1)
        if p.kind=='trans' and c.kind=='trans' and vdst & c.src: n=max(n,1)
        if c.kind=='rdlane' and vdst & c.src: n=max(n,1)
        if c.kind in ('perml','dpp') and vdst & c.src: n=max(n,2)
        if p.kind=='dot' and (vdst & (c.src|c.dst)):
            same = c.op==p.op
            if same and not (vdst & (c.src - c.dst)) : pass
            else: n=max(n,3)
        if sdst:
            if cv and sdst & c.src: n=max(n,4 if c.kind=='rdlane' else 2)
            if c.kind in ('vmem','dma','wstore') and sdst & c.src: n=max(n,5)
            if c.kind=='salu' and sdst & c.src: n=max(n,1)
        if 'sdwa' in p.op and 'dst_sel:DWORD' not in p.mods and vdst & (c.src|c.dst): n=max(n,1)
    if p.kind=='mfma':
        long_ = 12 if p.passes==8 else 8
        ovl   = 10 if p.passes==8 else 6
        war   = 7 if p.passes==8 else 3
        if c.kind=='mfma':
            if p.dst & c.srcAB: n=max(n,long_)
            if p.dst & c.srcC:
                if not (p.dst==c.srcC and p.passes==c.passes): n=max(n,ovl)
            if p.dst & c.dst and not (p.dst & c.srcC): n=max(n,ovl)
        else:
            if p.dst & (c.src|c.dst): n=max(n,long_)
            if cv and p.srcC & c.dst: n=max(n,war)
    if p.kind=='salu' and ('x','m0') in p.dst and c.kind=='dma': n=max(n,1)
    if p.kind=='wstore':
        data = regs_of(p.ops[0]) if p.op.startswith('buffer') else regs_of(p.ops[1])
        if data & c.dst: n=max(n,2 if cv else 1)
    return n

class Asm:
    def __init__(self):
        self.out=[]
        self.hist=[]
        self.vm=0
        self.lg=0
        self.nnop=0
        self.uid=0
    def raw(self, s): self.out.append(s)
    def comment(self, s): self.out.append('    ; '+s)
    def label(self, name):
        self.out.append(name+':')
    def newlabel(self, p='L'):
        self.uid+=1; return '%s_%d'%(p,self.uid)
    def reset_hist(self): self.hist=[]
    def pad_for(self, ins):
        dist=0; req=0
        for p in reversed(self.hist):
            r=need(p,ins)-dist
            if r>req: req=r
            dist+=p.states
            if dist>=20: break
        return req
    def __call__(self, text):
        for t in text.split('\n'):
            t=t.strip()
            if not t: continue
            ins=Inst(t)
            req=self.pad_for(ins)
            while req>0:
                k=min(req,16); nop=Inst('s_nop %d'%(k-1)); self.out.append('    '+nop.text); self.hist.append(nop); req-=k; self.nnop+=1
            self.out.append('    '+t); self.hist.append(ins)
            if len(self.hist)>40: self.hist=self.hist[-24:]
            if ins.kind in ('vmem','dma','wstore'): self.vm+=1
            if ins.kind=='ds': self.lg+=1
        return self
    def wait_vm(self, tag, lg_tag=None):
        n=self.vm-tag
        assert 0<=n
        s='s_waitcnt vmcnt(%d)'%min(n,63)
        if lg_tag is not None:
            m=self.lg-lg_tag; assert m>=0
            s+=' lgkmcnt(%d)'%min(m,15)
        self(s)
    def wait_lg(self, tag):
        m=self.lg-tag; assert m>=0
        self('s_waitcnt lgkmcnt(%d)'%min(m,15))
    def flush_hazards(self):
        dist=0; req=0
        for p in reversed(self.hist):
            w = 0
            if p.kind=='mfma': w = 12 if p.passes==8 else 8
            elif p.kind in VALUK: w = 5 if any(r[0] in 'sx' for r in p.dst) else 3 if p.kind=='dot' else 2
            elif p.kind=='wstore': w=2
            elif p.kind=='salu' and ('x','m0') in p.dst: w=1
            req=max(req,w-dist); dist+=p.states
            if dist>=20: break
        if req>0: self('s_nop %d'%(req-1))
    def text(self): return '\n'.join(self.out)+'\n'

def vr(a,n=1): return 'v%d'%a if n==1 else 'v[%d:%d]'%(a,a+n-1)
def sr(a,n=1): return 's%d'%a if n==1 else 's[%d:%d]'%(a,a+n-1)
def ar(a,n=1): return 'a%d'%a if n==1 else 'a[%d:%d]'%(a,a+n-1)

def kernel_desc(name, vgpr, sgpr=96, accum=None):
    if accum is None: accum=(vgpr+3)//4*4
    return f'''.section .rodata,"a"
.p2align 6
.amdhsa_kernel {name}
  .amdhsa_next_free_vgpr {vgpr}
  .amdhsa_next_free_sgpr {sgpr}
  .amdhsa_accum_offset {accum}
  .amdhsa_group_segment_fixed_size 0
  .amdhsa_kernarg_size 88
  .amdhsa_user_sgpr_count 2
  .amdhsa_user_sgpr_kernarg_segment_ptr 1
  .amdhsa_system_sgpr_workgroup_id_x 1
.end_amdhsa_kernel
.text
'''
def kernel_head(name):
    return f'''.globl {name}
.p2align 8
.type {name},@function
{name}:
'''
```

```python
from asm import *
import layout as L
import math
STAMPS=False
WS_SIZE = L.WS_USED
LO=0x05040100; HI=0x07060302

def srd(a, s, karg, size):
    a('s_load_dwordx2 s[%d:%d], s[0:1], %d'%(s,s+1,karg))
    a('s_mov_b32 s%d, 0x%x'%(s+2,size))
    a('s_mov_b32 s%d, 0x20000'%(s+3))

def stamp_begin(a):
    if STAMPS: a('s_memrealtime s[92:93]')
def stamp_end(a, kidx, ws=12):
    if not STAMPS: return
    a('s_waitcnt vmcnt(0) lgkmcnt(0)')
    a('s_memrealtime s[94:95]')
    a('s_waitcnt lgkmcnt(0)')
    a('v_mov_b32 v2, s92\nv_mov_b32 v3, s93\nv_mov_b32 v4, s94\nv_mov_b32 v5, s95')
    a('s_lshl_b32 s90, s2, 4')
    a('s_lshl_b32 s91, s3, 13')
    a('s_cmp_eq_u32 s3, 0')
    lab=a.newlabel('Lst')
    a('s_cbranch_scc0 %s'%lab)
    a('s_add_u32 s90, s90, 0x%x'%(L.STAMP+kidx*8192))
    a('v_mov_b32 v1, s90')
    a('s_mov_b64 exec, 1')
    a('buffer_store_dwordx4 v[2:5], v1, s[%d:%d], 0 offen'%(ws,ws+3))
    a('s_waitcnt vmcnt(0)')
    a.label(lab)

def wave_id(a, sdst=3, vlane=0):
    a('v_lshrrev_b32 v1, 6, v0')
    a('v_readfirstlane_b32 s%d, v1'%sdst)
    a('v_and_b32 v%d, 63, v0'%vlane)

def cheb_gen(a, frag0, nfr, c0, c1, vfk, vph0, vc2, vamp, step_mul, tmp, emul=None, fix=None, filler=None):
    for e in range(8):
        m,ad=emul[e]
        if m==0: a('v_mov_b32 v%d, v%d'%(c0+e,vph0))
        else: a('v_fmamk_f32 v%d, v%d, %s, v%d'%(c0+e,vfk,fhex(float(m)),vph0))
        if ad: a('v_add_f32 v%d, %s, v%d'%(c0+e,fhex(ad),c0+e))
    for e in range(8):
        a('v_fmamk_f32 v%d, v%d, %s, v%d'%(c1+e,vfk,fhex(float(step_mul)),c0+e))
    a('v_mul_f32 v%d, %s, v%d'%(vc2,fhex(float(step_mul)),vfk))
    a('v_cos_f32 v%d, v%d'%(vc2,vc2))
    for e in range(8): a('v_cos_f32 v%d, v%d'%(c0+e,c0+e))
    for e in range(8): a('v_cos_f32 v%d, v%d'%(c1+e,c1+e))
    a('v_add_f32 v%d, v%d, v%d'%(vc2,vc2,vc2))
    for e in range(8): a('v_mul_f32 v%d, v%d, v%d'%(c0+e,vamp,c0+e))
    for e in range(8): a('v_mul_f32 v%d, v%d, v%d'%(c1+e,vamp,c1+e))
    cur=[c0,c1]
    for n in range(nfr):
        c=cur[n&1]
        if n>=2:
            o=cur[(n+1)&1]
            for e in range(8): a('v_fma_f32 v%d, v%d, v%d, -v%d'%(c+e,vc2,o+e,c+e))
        regs=[c+e for e in range(8)]
        if fix: regs=fix(n,regs)
        for p in range(4): a('v_cvt_pk_bf16_f32 v%d, v%d, v%d'%(frag0+4*n+p,regs[2*p],regs[2*p+1]))

def g1_setup(a, s_nt, vlane, vfk, vph0, vamp, t0, t1, ssc):
    a('s_lshl_b32 s%d, s%d, 4'%(ssc,s_nt))
    a('s_cmp_lt_u32 s%d, 18'%s_nt)
    a('s_cselect_b32 s%d, 2, -287'%(ssc+1))
    a('s_add_i32 s%d, s%d, s%d'%(ssc,ssc,ssc+1))
    a('v_and_b32 v%d, 14, v%d'%(t0,vlane))
    a('v_add_u32 v%d, s%d, v%d'%(t0,ssc,t0))
    a('v_cvt_f32_u32 v%d, v%d'%(vfk,t0))
    a('v_mul_f32 v%d, %s, v%d'%(vfk,fhex(1/576.),vfk))
    a('v_cmp_eq_u32 vcc, 288, v%d'%t0)
    a('v_mov_b32 v%d, %s'%(vamp,fhex(math.sqrt(2/576.))))
    a('v_mov_b32 v%d, %s'%(t1,fhex(math.sqrt(1/576.))))
    a('v_cndmask_b32 v%d, v%d, v%d, vcc'%(vamp,vamp,t1))
    a('v_and_b32 v%d, 1, v%d'%(t0,vlane))
    a('v_cvt_f32_u32 v%d, v%d'%(t0,t0))
    a('v_mul_f32 v%d, 0.25, v%d'%(vph0,t0) if False else 'v_mul_f32 v%d, %s, v%d'%(vph0,fhex(0.25),t0))
    a('v_lshrrev_b32 v%d, 4, v%d'%(t0,vlane))
    a('v_lshlrev_b32 v%d, 3, v%d'%(t0,t0))
    a('v_cvt_f32_u32 v%d, v%d'%(t0,t0))
    a('v_fmac_f32 v%d, v%d, v%d'%(vph0,t0,vfk))
G1_E=[(e,0.0) for e in range(8)]

def code_prefetch(a, vt, sp, swave, start_label):
    lab=a.newlabel('Lpc')
    a('s_getpc_b64 s[%d:%d]'%(sp,sp+1))
    a.label(lab)
    a('s_sub_u32 s%d, s%d, %s-%s'%(sp,sp,lab,start_label))
    a('s_subb_u32 s%d, s%d, 0'%(sp+1,sp+1))
    a('v_lshlrev_b32 v%d, 7, v0'%vt)
    a('s_lshl_b32 s%d, s%d, 13'%(sp+2,swave))
    a('v_add_u32 v%d, s%d, v%d'%(vt,sp+2,vt))
    a('v_min_u32 v%d, CODE_END-%s-4, v%d'%(vt,start_label,vt))
    a('global_load_dword v%d, v%d, s[%d:%d]'%(vt,vt,sp,sp+1))

def repack_task(a, src_srd, rs, s_cg, s_kg, ws, dest, base=8):
    a('v_and_b32 v1, 7, v0\nv_lshrrev_b32 v2, 3, v0')
    a('s_mov_b32 s40, %d'%(8*rs))
    a('v_mul_lo_u32 v3, s40, v2' if 8*rs>=(1<<24) else 'v_mul_u32_u24 v3, s40, v2')
    a('v_lshl_add_u32 v3, v1, 4, v3')
    a('s_mul_i32 s40, s%d, %d'%(s_kg,64*rs))
    a('s_lshl_b32 s41, s%d, 7'%s_cg)
    a('s_add_u32 s40, s40, s41')
    for e in range(8):
        a('buffer_load_dwordx4 v[%d:%d], v3, s[%d:%d], s40 offen'%(base+4*e,base+4*e+3,src_srd,src_srd+3))
        if e<7: a('s_add_u32 s40, s40, %d'%rs)
    dest(a,1,2,4)
    a('s_mov_b32 s42, 0x%x\ns_mov_b32 s43, 0x%x'%(LO,HI))
    a('s_waitcnt vmcnt(0)')
    o=base+32
    for j in range(8):
        for p in range(4):
            a('v_perm_b32 v%d, v%d, v%d, s%d'%(o+4*j+p, base+4*(2*p+1)+(j>>1), base+4*(2*p)+(j>>1), 43 if j&1 else 42))
        a('buffer_store_dwordx4 v[%d:%d], v4, s[%d:%d], 0 offen offset:%d'%(o+4*j,o+4*j+3,ws,ws+3,16*j))

def dest_gl(off, s_cg, s_kg):
    def f(a,vc,vkb,vo):
        a('v_lshrrev_b32 v5, 1, v%d'%vc)
        a('s_lshl_b32 s41, s%d, 2'%s_cg)
        a('v_add_u32 v5, s41, v5')
        a('v_mul_u32_u24 v5, 18, v5')
        a('v_lshrrev_b32 v6, 2, v%d'%vkb)
        a('s_lshl_b32 s41, s%d, 1'%s_kg)
        a('v_add3_u32 v5, v5, v6, s41')
        a('v_lshlrev_b32 v5, 10, v5')
        a('v_and_b32 v6, 3, v%d'%vkb)
        a('v_lshl_add_u32 v5, v6, 8, v5')
        a('v_and_b32 v6, 1, v%d'%vc)
        a('v_lshl_add_u32 v5, v6, 7, v5')
        a('v_add_u32 v%d, 0x%x, v5'%(vo,off))
    return f

def dma_tile(a, srd_, voff, s_goff, s_tmp, nwaves, swave, nfrag=72, lds0=0, voffs=None):
    per=nfrag//nwaves
    assert per*nwaves==nfrag
    a('s_mul_i32 s%d, s%d, %d'%(s_tmp,swave,per*1024))
    a('s_add_u32 s%d, s%d, s%d'%(s_goff,s_goff,s_tmp))
    if lds0: a('s_add_u32 s%d, s%d, %d'%(s_tmp,s_tmp,lds0))
    for n in range(per):
        if n%4==0:
            if n:
                a('s_add_u32 s%d, s%d, 4096'%(s_tmp,s_tmp)); a('s_add_u32 s%d, s%d, 4096'%(s_goff,s_goff))
            a('s_mov_b32 m0, s%d'%s_tmp)
        a('buffer_load_dwordx4 v%d, s[%d:%d], s%d offen offset:%d lds'%(voff,srd_,srd_+3,s_goff,(n%4)*1024))

def gemm_core(a, wreg, acc, first, ring, vb0, vb1, wwait=None, hook=None, ntt=4, nks=18):
    N=ntt*nks; tags={}
    def rd(n):
        ks,tt=divmod(n,ntt); r=ring[n%len(ring)]
        vb=vb0 if tt<2 else vb1
        a('ds_read_b128 v[%d:%d], v%d offset:%d'%(r,r+3,vb,(tt&1)*18432+ks*1024)); tags[n]=a.lg
    depth=len(ring)
    for n in range(min(depth,N)): rd(n)
    for n in range(N):
        ks,tt=divmod(n,ntt); r=ring[n%depth]; d=acc(tt,ks); w=wreg(ks)
        if tt==0 and wwait: wwait(ks)
        a.wait_lg(tags[n])
        a('v_mfma_f32_16x16x32_bf16 v[%d:%d], v[%d:%d], v[%d:%d], %s'%(d,d+3,w,w+3,r,r+3,'0' if first(ks) else 'v[%d:%d]'%(d,d+3)))
        if hook: hook(tt,ks,r)
        if n+depth<N: rd(n+depth)

def gl_store_voff(a, vdst, t0):
    a('v_bfe_u32 v%d, v0, 4, 1'%t0)
    a('v_mul_u32_u24 v%d, 18432, v%d'%(vdst,t0))
    a('v_lshrrev_b32 v%d, 5, v0'%t0)
    a('v_lshl_add_u32 v%d, v%d, 8, v%d'%(vdst,t0,vdst))
    a('v_and_b32 v%d, 15, v0'%t0)
    a('v_lshl_add_u32 v%d, v%d, 4, v%d'%(vdst,t0,vdst))

def pack_swap(a, dst, accA, accB):
    a('v_cvt_pk_bf16_f32 v%d, v%d, v%d'%(dst,accA,accA+1))
    a('v_cvt_pk_bf16_f32 v%d, v%d, v%d'%(dst+1,accA+2,accA+3))
    a('v_cvt_pk_bf16_f32 v%d, v%d, v%d'%(dst+2,accB,accB+1))
    a('v_cvt_pk_bf16_f32 v%d, v%d, v%d'%(dst+3,accB+2,accB+3))
    a('v_permlane16_swap_b32 v%d, v%d'%(dst,dst+2))
    a('v_permlane16_swap_b32 v%d, v%d'%(dst+1,dst+3))

GK0=-2*0.7978845608028654*1.4426950408889634
GK1=GK0*0.044715
def gelu_inplace(a, regs, tmps, vk1):
    for r,t in zip(regs,tmps): a('v_mul_f32 v%d, v%d, v%d'%(t,r,r))
    for r,t in zip(regs,tmps): a('v_fmaak_f32 v%d, v%d, v%d, %s'%(t,t,vk1,fhex(GK0)))
    for r,t in zip(regs,tmps): a('v_mul_f32 v%d, v%d, v%d'%(t,t,r))
    for r,t in zip(regs,tmps): a('v_exp_f32 v%d, v%d'%(t,t))
    for r,t in zip(regs,tmps): a('v_add_f32 v%d, 1.0, v%d'%(t,t))
    for r,t in zip(regs,tmps): a('v_rcp_f32 v%d, v%d'%(t,t))
    for r,t in zip(regs,tmps): a('v_mul_f32 v%d, v%d, v%d'%(r,r,t))
```

```python
from common import *

def k1(a):
    name='k1_kernel'
    a.raw(kernel_head(name)); a.reset_hist()
    stamp_begin(a)
    srd(a,8,0,L.T)
    srd(a,12,80,WS_SIZE)
    wave_id(a)
    a('s_cmp_ge_u32 s2, 256')
    a('s_cbranch_scc1 K1_side')
    a('s_and_b32 s16, s2, 7\ns_lshr_b32 s17, s2, 3')
    a('s_lshl_b32 s16, s16, 2\ns_and_b32 s18, s17, 3\ns_add_u32 s16, s16, s18')
    a('s_bfe_u32 s18, s17, 0x10002')
    a('s_lshr_b32 s19, s17, 3')
    a('s_lshl_b32 s20, s18, 10\ns_add_u32 s20, s20, s16\ns_mul_i32 s20, s20, 1152')
    a('s_lshl_b32 s21, s3, 6\ns_add_u32 s20, s20, s21\ns_add_u32 s21, s20, 294912')
    a('v_and_b32 v1, 15, v0\nv_lshrrev_b32 v2, 4, v0')
    a('v_and_b32 v4, 8, v0\nv_add_u32 v4, v4, v1')
    a('v_mov_b32 v6, v4')
    a('v_mul_u32_u24 v4, 36864, v4\nv_lshl_add_u32 v4, v2, 4, v4')
    a('s_waitcnt lgkmcnt(0)')
    for tt in range(2):
        for p in range(2):
            r=8+(tt*2+p)*4
            a('buffer_load_dwordx4 v[%d:%d], v4, s[8:11], s%d offen offset:%d'%(r,r+3,20+tt,576*p))
    code_prefetch(a,7,24,3,'CODE_START')
    xtag=a.vm
    a('s_mul_i32 s22, s19, 9\ns_add_u32 s22, s22, s3')
    g1_setup(a,22,0,76,78,79,60,61,24)
    cheb_gen(a,24,9,60,68,76,78,77,79,32,None,emul=G1_E)
    a('s_mov_b32 s30, 0x3f803f80')
    a('v_lshlrev_b32 v3, 4, v0')
    for r in range(60,64): a('v_mov_b32 v%d, 0'%r)
    a.wait_vm(xtag)
    for q in range(8):
        for tt in range(2):
            x=8+tt*8+q
            a('v_dot2c_f32_bf16 v%d, s30, v%d'%(60+tt,x))
            a('v_dot2c_f32_bf16 v%d, v%d, v%d'%(62+tt,x,x))
    a('v_permlane16_swap_b32 v60, v61\nv_permlane16_swap_b32 v62, v63')
    a('v_add_f32 v60, v60, v61\nv_add_f32 v62, v62, v63')
    a('v_permlane32_swap_b32 v60, v62')
    a('v_add_f32 v60, v60, v62')
    RED=36864
    a('v_lshlrev_b32 v5, 2, v0')
    a('s_lshl_b32 s23, s3, 8')
    a('v_add_u32 v61, s23, v5')
    a('ds_write_b32 v61, v60 offset:%d'%RED)
    a('s_waitcnt lgkmcnt(0)\ns_barrier')
    for q in range(4): a('ds_read2st64_b32 v[%d:%d], v5 offset0:%d offset1:%d'%(60+2*q,61+2*q,RED//256+2*q,RED//256+2*q+1))
    a('ds_read_b32 v68, v5 offset:%d'%(RED+2048))
    a('s_waitcnt lgkmcnt(0)')
    a('v_add_f32 v60, v60, v61\nv_add_f32 v62, v62, v63\nv_add_f32 v64, v64, v65\nv_add_f32 v66, v66, v67')
    a('v_add_f32 v60, v60, v62\nv_add_f32 v64, v64, v66\nv_add_f32 v60, v60, v68\nv_add_f32 v60, v60, v64')
    a('v_mov_b32 v61, v60')
    a('v_permlane32_swap_b32 v60, v61')
    a('v_mul_f32 v60, %s, v60'%fhex(1/576.))
    a('v_mul_f32 v62, v60, v60')
    a('v_fma_f32 v61, v61, v%d, -v62'%63 if False else 'v_mov_b32 v63, %s'%fhex(1/576.))
    a('v_fma_f32 v61, v61, v63, -v62')
    a('v_max_f32 v61, 0, v61')
    a('v_add_f32 v61, %s, v61'%fhex(1e-5))
    a('v_rsq_f32 v62, v61')
    a('v_mul_f32 v63, v60, v62')
    a('v_mul_f32 v63, -2.0, v63')
    lab=a.newlabel('Lns')
    a('s_or_b32 s23, s19, s3\ns_cmp_lg_u32 s23, 0\ns_cbranch_scc1 %s'%lab)
    a('v_lshl_add_u32 v64, v2, 3, v6')
    a('s_lshl_b32 s23, s18, 5')
    a('v_add_u32 v64, s23, v64')
    a('v_lshlrev_b32 v65, 5, v64\nv_add_u32 v65, s16, v65\nv_lshlrev_b32 v65, 2, v65')
    a('s_lshl_b32 s23, s16, 6\nv_add_u32 v64, s23, v64\nv_lshlrev_b32 v64, 2, v64')
    a('v_mul_f32 v66, v61, v62')
    a('v_mul_f32 v67, %s, v62'%fhex(2.0**-11))
    a('s_mov_b32 s23, 0x%x'%L.STAT)
    a('s_mov_b32 exec_hi, 0')
    a('buffer_store_dword v67, v64, s[12:15], s23 offen')
    a('s_add_u32 s23, s23, 8192')
    a('buffer_store_dword v60, v65, s[12:15], s23 offen')
    a('s_add_u32 s23, s23, 8192')
    a('buffer_store_dword v66, v65, s[12:15], s23 offen')
    a('s_mov_b64 exec, -1')
    a.flush_hazards()
    a.label(lab)
    a('v_mov_b32 v64, v62\nv_mov_b32 v65, v63')
    a('v_permlane16_swap_b32 v62, v64\nv_permlane16_swap_b32 v63, v65')
    a('s_lshl_b32 s23, s3, 10')
    a('v_add_u32 v5, s23, v3')
    a('s_mov_b32 s31, 0xffff0000')
    for tt in range(2):
        rs_,nm=62+2*tt,63+2*tt
        lo=8+tt*8; hi=lo+4
        for q in range(4):
            a('v_lshlrev_b32 v66, 16, v%d\nv_and_b32 v67, s31, v%d\nv_lshlrev_b32 v68, 16, v%d\nv_and_b32 v69, s31, v%d'%(lo+q,lo+q,hi+q,hi+q))
            a('v_add_f32 v70, v66, v68\nv_add_f32 v71, v67, v69\nv_sub_f32 v72, v66, v68\nv_sub_f32 v73, v67, v69')
            a('v_fma_f32 v70, v70, v%d, v%d\nv_fma_f32 v71, v71, v%d, v%d'%(rs_,nm,rs_,nm))
            a('v_mul_f32 v72, v72, v%d\nv_mul_f32 v73, v73, v%d'%(rs_,rs_))
            a('v_cvt_pk_bf16_f32 v%d, v70, v71\nv_cvt_pk_bf16_f32 v%d, v72, v73'%(lo+q,hi+q))
        a('ds_write_b128 v5, v[%d:%d] offset:%d'%(lo,lo+3,tt*18432))
        a('ds_write_b128 v5, v[%d:%d] offset:%d'%(hi,hi+3,tt*18432+9216))
    a('s_cmp_ge_u32 s22, 18\ns_cselect_b32 s23, 9216, 0')
    a('v_add_u32 v3, s23, v3')
    a('s_lshl_b32 s23, s22, 4\nv_add_u32 v1, s23, v1\nv_lshlrev_b32 v1, 12, v1')
    a('v_lshl_add_u32 v1, v2, 4, v1')
    a('s_lshl_b32 s23, s16, 7\ns_lshl_b32 s24, s18, 6\ns_add_u32 s23, s23, s24')
    if L.XDT: a('s_add_u32 s23, s23, 0x%x'%L.XDT)
    a('s_waitcnt lgkmcnt(0)\ns_barrier')
    ring=[8,12,16,20,60,64,68,72]
    tags={}
    def rd(n):
        ks,tt=n>>1,n&1; r=ring[n%8]
        a('ds_read_b128 v[%d:%d], v3 offset:%d'%(r,r+3,tt*18432+ks*1024)); tags[n]=a.lg
    for n in range(8): rd(n)
    for n in range(18):
        ks,tt=n>>1,n&1; r=ring[n%8]; d=(76,4)[tt]
        a.wait_lg(tags[n])
        a('v_mfma_f32_16x16x32_bf16 v[%d:%d], v[%d:%d], v[%d:%d], %s'%(d,d+3,r,r+3,24+4*ks,27+4*ks,'0' if ks==0 else 'v[%d:%d]'%(d,d+3)))
        if n+8<18: rd(n+8)
    a('v_cvt_pk_bf16_f32 v8, v76, v77\nv_cvt_pk_bf16_f32 v9, v78, v79\nv_cvt_pk_bf16_f32 v10, v4, v5\nv_cvt_pk_bf16_f32 v11, v6, v7')
    a('buffer_store_dwordx4 v[8:11], v1, s[12:15], s23 offen')
    stamp_end(a,0)
    a('s_endpgm')
    a.label('K1_side'); a.reset_hist()
    a('s_cmp_ge_u32 s2, 288\ns_cbranch_scc1 K1_w1')
    srd(a,16,8,2048*578); srd(a,20,16,2048*578)
    a('s_and_b32 s24, s2, 1\ns_bfe_u32 s25, s2, 0x20001\ns_bfe_u32 s26, s2, 0x20003')
    a('s_mul_i32 s26, s26, 9\ns_add_u32 s26, s26, s3')
    a('s_lshl_b32 s27, s24, 5\ns_lshl_b32 s28, s25, 9\ns_add_u32 s27, s27, s28\ns_mul_i32 s27, s27, 578')
    a('s_lshl_b32 s28, s26, 4\ns_add_u32 s27, s27, s28\ns_add_u32 s27, s27, 2')
    a('v_and_b32 v1, 31, v0\nv_lshrrev_b32 v2, 5, v0\nv_lshl_add_u32 v1, v2, 8, v1\nv_mul_u32_u24 v1, 578, v1')
    a('s_waitcnt lgkmcnt(0)')
    for r in range(4):
        a('buffer_load_dwordx4 v[%d:%d], v1, s[16:19], s27 offen'%(8+4*r,11+4*r))
        a('buffer_load_dwordx4 v[%d:%d], v1, s[20:23], s27 offen'%(24+4*r,27+4*r))
        if r<3: a('s_add_u32 s27, s27, %d'%(578*64))
    a('s_lshl_b32 s28, s26, 15\ns_lshl_b32 s29, s24, 12\ns_add_u32 s28, s28, s29\ns_lshl_b32 s29, s25, 10\ns_add_u32 s28, s28, s29')
    a('s_add_u32 s28, s28, 0x%x'%L.WT)
    a('s_add_u32 s29, s28, %d'%(144*8192))
    a('s_mov_b32 s42, 0x%x\ns_mov_b32 s43, 0x%x'%(LO,HI))
    a('v_lshlrev_b32 v3, 4, v0')
    a('s_waitcnt vmcnt(0)')
    for t in range(8):
        o=40+4*t
        for r in range(4): a('v_perm_b32 v%d, v%d, v%d, s%d'%(o+r,24+4*r+(t>>1),8+4*r+(t>>1),43 if t&1 else 42))
        sb=28 if t&1 else 29
        a('buffer_store_dwordx4 v[%d:%d], v3, s[12:15], s%d offen'%(o,o+3,sb))
        a('s_add_u32 s%d, s%d, 8192'%(sb,sb))
    stamp_end(a,0)
    a('s_endpgm')
    a.label('K1_w1'); a.reset_hist()
    a('s_cmp_ge_u32 s2, 297\ns_cbranch_scc1 K1_exit')
    srd(a,16,32,L.WM)
    a('s_sub_u32 s24, s2, 288')
    a('s_waitcnt lgkmcnt(0)')
    repack_task(a,16,1152,24,3,12,dest_gl(L.W1R,24,3))
    stamp_end(a,0)
    a.label('K1_exit')
    a('s_endpgm')
    return dict(name=name,grid=297,block=576,lds=36864+2304,vgpr=80)
```

```python
T = 2048*576*2
WM = 576*576*2
XDT  = 0
WT   = XDT + T
Z    = WT + T
HS   = Z + T
H    = HS + T
G    = H + T
X1   = G + T
W1R  = X1 + T
W2R  = W1R + WM
CW1R = W2R + WM
W34R = CW1R + WM
PART = W34R + 2*576*4608*2
STAT = PART + 8*T
RS2  = STAT
MEAN = STAT + 8192
SIG  = STAT + 16384
RH   = STAT + 24576
STAMP= STAT + 32768
WS_USED = STAMP + 8*524288
```

```python
import sys, common
from asm import *
NAME='sequential_preLN__spectral_gfnet__mixer_s_mlp__prompt'
def build(path, kernels, stamps=False):
    common.STAMPS=stamps
    a=Asm()
    a.raw('CODE_START:')
    ks=[k(a) for k in kernels]
    a.raw('CODE_END:')
    hdr=open('cdna_kernels/%s.s.ref'%NAME).read().split('; Override launch')[0]
    s=hdr
    for k in ks: s+='; @launch kernel=%s grid=(%d,1,1) block=(%d,1,1) lds=%d\n'%(k['name'],k['grid'],k['block'],k['lds'])
    s+='.amdgcn_target "amdgcn-amd-amdhsa--gfx950"\n.text\n.p2align 8\n'+a.text()
    seen=set()
    for k in ks:
        if k['name'] in seen: continue
        seen.add(k['name']); s+=kernel_desc(k['name'],k['vgpr'],k.get('sgpr',96),k.get('accum'))
    open(path,'w').write(s)
    print('wrote',path,len(s),'bytes; nops inserted',a.nnop)
if __name__=='__main__':
    from k1 import k1
    ks=[k1]
    for m in ('k2','k3','k4'):
        try:
            mod=__import__(m); ks+=mod.KERNELS
        except ImportError as e: print('missing',m)
    build('dev.s',ks,stamps=False)
    build('devst.s',ks,stamps=True)
    build('cdna_kernels/%s.s'%NAME,ks,stamps=False)
```

```python
from asm import *
import layout as L
import math
STAMPS=False
WS_SIZE = L.WS_USED
LO=0x05040100; HI=0x07060302

def srd(a, s, karg, size):
    a('s_load_dwordx2 s[%d:%d], s[0:1], %d'%(s,s+1,karg))
    a('s_mov_b32 s%d, 0x%x'%(s+2,size))
    a('s_mov_b32 s%d, 0x20000'%(s+3))

import os
def OPT(name, default=0):
    return int(os.environ.get(name, default))
NST=7
def stamp_begin(a):
    if STAMPS:
        a('s_memrealtime s[76:77]')
        for i in range(1,NST): a('s_mov_b64 s[%d:%d], 0'%(76+2*i,77+2*i))
def stamp(a, i):
    if STAMPS and not (OPT('CLK') and i in (3,4)):
        a('s_memrealtime s[%d:%d]'%(76+2*i,77+2*i)); a('s_waitcnt lgkmcnt(0)')
def stamp_clk(a, i):
    if STAMPS and OPT('CLK'):
        a('s_memtime s[%d:%d]'%(76+2*i,77+2*i)); a('s_waitcnt lgkmcnt(0)')
def stamp_end(a, kidx, ws=12, wave=0):
    if not STAMPS: return
    a('s_waitcnt vmcnt(0) lgkmcnt(0)')
    a('s_memrealtime s[%d:%d]'%(76+2*(NST-1),77+2*(NST-1)))
    a('s_waitcnt lgkmcnt(0)')
    for i in range(2*NST): a('v_mov_b32 v%d, s%d'%(4+i,76+i))
    a('v_mov_b32 v18, 0\nv_mov_b32 v19, 0')
    a('s_lshl_b32 s74, s2, 10\ns_lshl_b32 s75, s3, 6\ns_add_u32 s74, s74, s75')
    a('s_add_u32 s74, s74, 0x%x'%(L.STAMP+kidx*524288))
    a('v_mov_b32 v1, s74')
    a('s_mov_b64 exec, 1')
    for q in range(4): a('buffer_store_dwordx4 v[%d:%d], v1, s[%d:%d], 0 offen offset:%d'%(4+4*q,7+4*q,ws,ws+3,16*q))
    a('s_waitcnt vmcnt(0)')

def wave_id(a, sdst=3, vlane=0):
    a('v_lshrrev_b32 v1, 6, v0')
    a('v_readfirstlane_b32 s%d, v1'%sdst)
    a('v_and_b32 v%d, 63, v0'%vlane)

def pk(op,d,x,y,z=None,bx=False,by=False,bz=False,nx=False,ny=False,nz=False):
    f=lambda r: r if isinstance(r,str) else 'v[%d:%d]'%(r,r+1)
    ops=[x,y]+([z] if z is not None else []); bs=[bx,by,bz][:len(ops)]; ns=[nx,ny,nz][:len(ops)]
    t='v_pk_%s_f32 %s, %s'%(op,f(d),', '.join(f(o) for o in ops))
    if any(bs): t+=' op_sel_hi:[%s]'%','.join('0' if b else '1' for b in bs)
    if any(ns):
        n=','.join('1' if b else '0' for b in ns); t+=' neg_lo:[%s] neg_hi:[%s]'%(n,n)
    return t

def cheb_gen(a, frag0, nfr, c0, c1, vfk, vph0, vc2, vamp, step_mul, ssc, emul=None, fix=None):
    for r in (vfk,vph0,vc2,vamp,c0,c1): assert r%2==0
    adds=[ad for m,ad in emul]
    if any(adds):
        assert adds==[0.0,0.25]*4
        a('v_add_f32 v%d, %s, v%d'%(vph0+1,fhex(0.25),vph0))
    for p in range(4):
        a('s_mov_b32 s%d, %s\ns_mov_b32 s%d, %s'%(ssc,fhex(float(emul[2*p][0])),ssc+1,fhex(float(emul[2*p+1][0]))))
        a(pk('fma',c0+2*p,vfk,'s[%d:%d]'%(ssc,ssc+1),vph0,bx=True,bz=not any(adds)))
    a('v_mul_f32 v%d, %s, v%d'%(vc2,fhex(float(step_mul)),vfk))
    for p in range(4): a(pk('add',c1+2*p,c0+2*p,vc2,by=True))
    a('v_cos_f32 v%d, v%d'%(vc2,vc2))
    for e in range(8): a('v_cos_f32 v%d, v%d'%(c0+e,c0+e))
    for e in range(8): a('v_cos_f32 v%d, v%d'%(c1+e,c1+e))
    a('v_add_f32 v%d, v%d, v%d'%(vc2,vc2,vc2))
    for p in range(4): a(pk('mul',c0+2*p,c0+2*p,vamp,by=True))
    for p in range(4): a(pk('mul',c1+2*p,c1+2*p,vamp,by=True))
    cur=[c0,c1]
    for n in range(nfr):
        c=cur[n&1]
        if n>=2:
            o=cur[(n+1)&1]
            for p in range(4): a(pk('fma',c+2*p,o+2*p,vc2,c+2*p,by=True,nz=True))
        regs=[c+e for e in range(8)]
        if fix: regs=fix(n,regs)
        for p in range(4): a('v_cvt_pk_bf16_f32 v%d, v%d, v%d'%(frag0+4*n+p,regs[2*p],regs[2*p+1]))

def g1_setup(a, s_nt, vlane, vfk, vph0, vamp, t0, t1, ssc):
    a('s_lshl_b32 s%d, s%d, 4'%(ssc,s_nt))
    a('s_cmp_lt_u32 s%d, 18'%s_nt)
    a('s_cselect_b32 s%d, 2, -287'%(ssc+1))
    a('s_add_i32 s%d, s%d, s%d'%(ssc,ssc,ssc+1))
    a('v_and_b32 v%d, 14, v%d'%(t0,vlane))
    a('v_add_u32 v%d, s%d, v%d'%(t0,ssc,t0))
    a('v_cvt_f32_u32 v%d, v%d'%(vfk,t0))
    a('v_mul_f32 v%d, %s, v%d'%(vfk,fhex(1/576.),vfk))
    a('v_cmp_eq_u32 vcc, 288, v%d'%t0)
    a('v_mov_b32 v%d, %s'%(vamp,fhex(math.sqrt(2/576.))))
    a('v_mov_b32 v%d, %s'%(t1,fhex(math.sqrt(1/576.))))
    a('v_cndmask_b32 v%d, v%d, v%d, vcc'%(vamp,vamp,t1))
    a('v_and_b32 v%d, 1, v%d'%(t0,vlane))
    a('v_cvt_f32_u32 v%d, v%d'%(t0,t0))
    a('v_mul_f32 v%d, 0.25, v%d'%(vph0,t0) if False else 'v_mul_f32 v%d, %s, v%d'%(vph0,fhex(0.25),t0))
    a('v_lshrrev_b32 v%d, 4, v%d'%(t0,vlane))
    a('v_lshlrev_b32 v%d, 3, v%d'%(t0,t0))
    a('v_cvt_f32_u32 v%d, v%d'%(t0,t0))
    a('v_fmac_f32 v%d, v%d, v%d'%(vph0,t0,vfk))
G1_E=[(e,0.0) for e in range(8)]

def code_prefetch(a, sp, sidx, start_label):
    lab=a.newlabel('Lpc')
    a('s_getpc_b64 s[%d:%d]'%(sp,sp+1))
    a.label(lab)
    a('s_sub_u32 s%d, s%d, %s-%s'%(sp,sp,lab,start_label))
    a('s_subb_u32 s%d, s%d, 0'%(sp+1,sp+1))
    a('s_lshl_b32 s%d, s%d, 8'%(sp+2,sidx))
    a('s_min_u32 s%d, s%d, CODE_END-%s-256'%(sp+2,sp+2,start_label))
    a('s_add_u32 s%d, s%d, s%d\ns_addc_u32 s%d, s%d, 0'%(sp,sp,sp+2,sp+1,sp+1))
    a('s_load_dword s%d, s[%d:%d], 0\ns_load_dword s%d, s[%d:%d], 128'%(sp+3,sp,sp+1,sp+4,sp,sp+1))

def dpp_quad(a, op, d, x, y, perm):
    q='quad_perm:[%d,%d,%d,%d] row_mask:0xf bank_mask:0xf'%tuple(perm)
    if op=='mov': a('v_mov_b32_dpp v%d, v%d %s'%(d,x,q))
    else: a('v_%s_f32_dpp v%d, v%d, v%d %s'%(op,d,x,y,q))

def nat_voffs(a, rs, ve, vo, t0, t1):
    a('v_lshrrev_b32 v%d, 3, v0'%t0)
    a('v_and_b32 v%d, 2, v%d'%(t1,t0))
    a('v_and_b32 v%d, 7, v0'%ve)
    a('v_xor_b32 v%d, v%d, v%d'%(ve,ve,t1))
    a('v_lshlrev_b32 v%d, 4, v%d'%(ve,ve))
    a('v_mul_u32_u24 v%d, %d, v%d'%(t0,rs,t0))
    a('v_xor_b32 v%d, 64, v%d'%(vo,ve))
    a('v_add_u32 v%d, v%d, v%d\nv_add_u32 v%d, v%d, v%d'%(ve,ve,t0,vo,vo,t0))
def nat_dma(a, srd_, rs, ve, vo, s_src, s_lds):
    for n in range(8):
        a('s_mov_b32 m0, s%d'%s_lds)
        a('buffer_load_dwordx4 v%d, s[%d:%d], s%d offen lds'%(vo if n&1 else ve,srd_,srd_+3,s_src))
        a('s_add_u32 s%d, s%d, 1024\ns_add_u32 s%d, s%d, %d'%(s_lds,s_lds,s_src,s_src,8*rs))
def tr_addr(a, va, t0, t1):
    a('v_lshrrev_b32 v%d, 4, v0'%t0)
    a('v_bfe_u32 v%d, v0, 2, 2'%t1)
    a('v_lshl_add_u32 v%d, v%d, 3, v%d'%(va,t0,t1))
    a('v_lshlrev_b32 v%d, 7, v%d'%(va,va))
    a('v_and_b32 v%d, 1, v%d\nv_lshlrev_b32 v%d, 1, v%d'%(t0,t0,t0,t0))
    a('v_lshrrev_b32 v%d, 1, v%d\nv_or_b32 v%d, v%d, v%d'%(t1,t1,t0,t0,t1))
    a('v_lshl_add_u32 v%d, v%d, 5, v%d'%(va,t0,va))
    a('v_and_b32 v%d, 3, v0\nv_lshl_add_u32 v%d, v%d, 3, v%d'%(t1,va,t1,va))
    for tl in range(1,4): a('v_xor_b32 v%d, %d, v%d'%(va+tl,32*tl,va))
def tr_frag(a, dst, va, tl, off):
    a('ds_read_b64_tr_b16 v[%d:%d], v%d offset:%d'%(dst,dst+1,va+tl,off))
    a('ds_read_b64_tr_b16 v[%d:%d], v%d offset:%d'%(dst+2,dst+3,va+tl,off+512))

def repack_tasks(a, ntask, srd_, rs, src_off, dst_off, ws, swave, kstep):
    nat_voffs(a,rs,1,2,3,4)
    a('s_mul_i32 s44, s%d, %d'%(swave,8192*ntask))
    a('s_mov_b32 s41, s44')
    tags=[]
    for i in range(ntask):
        src_off(a,i,40)
        nat_dma(a,srd_,rs,1,2,40,41); tags.append(a.vm)
    tr_addr(a,8,3,4)
    for tl in range(4): a('v_add_u32 v%d, s44, v%d'%(8+tl,8+tl))
    a('v_lshlrev_b32 v3, 4, v0')
    for i in range(ntask):
        a.wait_vm(tags[i])
        b=16+32*(i&1)
        lt={}
        for tl in range(4):
            for ksl in range(2):
                tr_frag(a,b+8*tl+4*ksl,8,tl,i*8192+ksl*4096)
            lt[tl]=a.lg
        for tl in range(4):
            dst_off(a,i,tl,42)
            a.wait_lg(lt[tl])
            a('buffer_store_dwordx4 v[%d:%d], v3, s[%d:%d], s42 offen'%(b+8*tl,b+8*tl+3,ws,ws+3))
            a('buffer_store_dwordx4 v[%d:%d], v3, s[%d:%d], s42 offen offset:%d'%(b+8*tl+4,b+8*tl+7,ws,ws+3,kstep))

def div9(a, q, r, x):
    a('s_mul_i32 s%d, s%d, 7282\ns_lshr_b32 s%d, s%d, 16\ns_mul_i32 s%d, s%d, 9\ns_sub_u32 s%d, s%d, s%d'%(q,x,q,q,r,q,r,x,r))

def w34_job(a, which, ntask, s_t0, srd_, swave):
    for i in range(ntask):
        b=48+4*i
        a('s_add_u32 s45, s%d, %d'%(s_t0,i))
        div9(a,b,b+1,45)
        div9(a,b+2,b+3,b)
    rs=9216 if which==3 else 1152
    def src(a,i,sd):
        b=48+4*i; cg,kg=(b,b+1) if which==3 else (b+1,b)
        a('s_mul_i32 s%d, s%d, %d\ns_lshl_b32 s45, s%d, 7\ns_add_u32 s%d, s%d, s45'%(sd,kg,64*rs,cg,sd,sd))
    def dst(a,i,tl,sd):
        b=48+4*i; tg,kg=(b+3,b+1) if which==3 else (b+1,b+3)
        a('s_lshl_b32 s45, s%d, 2\ns_add_u32 s45, s45, %d'%(tg,tl))
        a('s_mul_i32 s46, s45, 43\ns_lshr_b32 s46, s46, 7\ns_mul_i32 s46, s46, 105\ns_add_u32 s45, s45, s46')
        a('s_mul_i32 s46, s%d, 1296\ns_add_u32 s45, s45, s46\ns_mul_i32 s46, s%d, 6\ns_add_u32 s45, s45, s46'%(b+2,kg))
        a('s_lshl_b32 s45, s45, 10\ns_add_u32 s%d, s45, 0x%x'%(sd,L.W34R+(0 if which==3 else 54*1024)))
    repack_tasks(a,ntask,srd_,rs,src,dst,12,swave,3072)

def dma_tile(a, srd_, voff, s_goff, s_tmp, nwaves, swave, nfrag=72, lds0=0, voffs=None):
    per=nfrag//nwaves
    assert per*nwaves==nfrag
    a('s_mul_i32 s%d, s%d, %d'%(s_tmp,swave,per*1024))
    a('s_add_u32 s%d, s%d, s%d'%(s_goff,s_goff,s_tmp))
    if lds0: a('s_add_u32 s%d, s%d, %d'%(s_tmp,s_tmp,lds0))
    for n in range(per):
        if n%4==0:
            if n:
                a('s_add_u32 s%d, s%d, 4096'%(s_tmp,s_tmp)); a('s_add_u32 s%d, s%d, 4096'%(s_goff,s_goff))
            a('s_mov_b32 m0, s%d'%s_tmp)
        a('buffer_load_dwordx4 v%d, s[%d:%d], s%d offen offset:%d lds'%(voff,srd_,srd_+3,s_goff,(n%4)*1024))

def gemm_core(a, wreg, acc, first, ring, vb0, vb1, wwait=None, hook=None, ntt=4, nks=18, rdfrag=None):
    N=ntt*nks; tags={}
    def rd(n):
        ks,tt=divmod(n,ntt); r=ring[n%len(ring)]
        vb=vb0 if tt<2 else vb1
        if rdfrag: rdfrag(a,r,tt,ks)
        else: a('ds_read_b128 v[%d:%d], v%d offset:%d'%(r,r+3,vb,(tt&1)*18432+ks*1024))
        tags[n]=a.lg
    depth=len(ring)
    for n in range(min(depth,N)): rd(n)
    for n in range(N):
        ks,tt=divmod(n,ntt); r=ring[n%depth]; d=acc(tt,ks); w=wreg(ks)
        if tt==0 and wwait: wwait(ks)
        a.wait_lg(tags[n])
        a('v_mfma_f32_16x16x32_bf16 v[%d:%d], v[%d:%d], v[%d:%d], %s'%(d,d+3,w,w+3,r,r+3,'0' if first(ks) else 'v[%d:%d]'%(d,d+3)))
        if hook: hook(tt,ks,r)
        if n+depth<N: rd(n+depth)

def gl_store_voff(a, vdst, t0):
    a('v_bfe_u32 v%d, v0, 4, 1'%t0)
    a('v_mul_u32_u24 v%d, 18432, v%d'%(vdst,t0))
    a('v_lshrrev_b32 v%d, 5, v0'%t0)
    a('v_lshl_add_u32 v%d, v%d, 8, v%d'%(vdst,t0,vdst))
    a('v_and_b32 v%d, 15, v0'%t0)
    a('v_lshl_add_u32 v%d, v%d, 4, v%d'%(vdst,t0,vdst))

def pack_swap(a, dst, accA, accB):
    a('v_cvt_pk_bf16_f32 v%d, v%d, v%d'%(dst,accA,accA+1))
    a('v_cvt_pk_bf16_f32 v%d, v%d, v%d'%(dst+1,accA+2,accA+3))
    a('v_cvt_pk_bf16_f32 v%d, v%d, v%d'%(dst+2,accB,accB+1))
    a('v_cvt_pk_bf16_f32 v%d, v%d, v%d'%(dst+3,accB+2,accB+3))
    a('v_permlane16_swap_b32 v%d, v%d'%(dst,dst+2))
    a('v_permlane16_swap_b32 v%d, v%d'%(dst+1,dst+3))

GK0=-2*0.7978845608028654*1.4426950408889634
GK1=GK0*0.044715
def gelu_inplace(a, r0, n, t0, sk):
    P=range(0,n,2)
    for p in P: a(pk('mul',t0+p,r0+p,r0+p))
    for p in P: a('v_pk_fma_f32 v[%d:%d], v[%d:%d], s[%d:%d], s[%d:%d] op_sel:[0,0,1] op_sel_hi:[1,0,1]'%(t0+p,t0+p+1,t0+p,t0+p+1,sk,sk+1,sk,sk+1))
    for p in P: a(pk('mul',t0+p,t0+p,r0+p))
    for e in range(n): a('v_exp_f32 v%d, v%d'%(t0+e,t0+e))
    for p in P: a(pk('add',t0+p,t0+p,'1.0',by=True))
    for e in range(n): a('v_rcp_f32 v%d, v%d'%(t0+e,t0+e))
    for p in P: a(pk('mul',r0+p,r0+p,t0+p))
def gelu_consts(a, sk):
    a('s_mov_b32 s%d, %s\ns_mov_b32 s%d, %s'%(sk,fhex(GK1),sk+1,fhex(GK0)))
```

```python
from common import *

def k1(a):
    name='k1_kernel'
    a.raw(kernel_head(name)); a.reset_hist()
    stamp_begin(a)
    srd(a,8,0,L.T)
    srd(a,12,80,WS_SIZE)
    wave_id(a)
    a('s_cmp_ge_u32 s2, 256')
    a('s_cbranch_scc1 K1_side')
    a('s_and_b32 s16, s2, 7\ns_bfe_u32 s18, s2, 0x30003\ns_lshr_b32 s19, s2, 6')
    a('s_lshr_b32 s17, s16, 1\ns_lshl_b32 s17, s17, 4\ns_and_b32 s20, s16, 1\ns_lshl_b32 s20, s20, 2\ns_add_u32 s17, s17, s20')
    a('s_lshl_b32 s17, s17, 5\ns_lshl_b32 s20, s18, 2\ns_add_u32 s17, s17, s20')
    a('s_mul_i32 s20, s17, 1152')
    a('s_lshl_b32 s21, s3, 6\ns_add_u32 s20, s20, s21\ns_add_u32 s21, s20, 294912')
    a('v_lshrrev_b32 v1, 2, v0\nv_and_b32 v2, 3, v0')
    a('v_and_b32 v4, 3, v1\nv_lshlrev_b32 v4, 5, v4\nv_lshrrev_b32 v6, 4, v0\nv_add_u32 v6, v4, v6')
    a('v_mul_u32_u24 v4, 1152, v6\nv_lshl_add_u32 v4, v2, 4, v4')
    a('s_waitcnt lgkmcnt(0)')
    for tt in range(2):
        for p in range(2):
            r=8+(tt*2+p)*4
            a('buffer_load_dwordx4 v[%d:%d], v4, s[8:11], s%d offen offset:%d'%(r,r+3,20+tt,576*p))
    xtag=a.vm
    a('s_lshr_b32 s23, s2, 3\ns_mul_i32 s23, s23, 9\ns_add_u32 s23, s23, s3')
    code_prefetch(a,32,23,'CODE_START')
    a('s_mul_i32 s22, s19, 9\ns_add_u32 s22, s22, s3')
    g1_setup(a,22,0,76,78,4,60,61,24)
    cheb_gen(a,24,9,60,68,76,78,78,4,32,24,emul=G1_E)
    a('s_mov_b32 s30, 0x3f803f80')
    a('v_lshlrev_b32 v3, 4, v0')
    for r in range(60,64): a('v_mov_b32 v%d, 0'%r)
    stamp(a,1)
    a.wait_vm(xtag)
    stamp(a,2)
    for q in range(8):
        for tt in range(2):
            x=8+tt*8+q
            a('v_dot2c_f32_bf16 v%d, s30, v%d'%(60+tt,x))
            a('v_dot2c_f32_bf16 v%d, v%d, v%d'%(62+tt,x,x))
    for perm in ((1,0,3,2),(2,3,0,1)):
        for r in range(60,64): dpp_quad(a,'add',r,r,r,perm)
    a('v_cmp_eq_u32 vcc, 1, v2\nv_cndmask_b32 v60, v60, v61, vcc\nv_cmp_eq_u32 vcc, 2, v2\nv_cndmask_b32 v60, v60, v62, vcc')
    a('v_cmp_eq_u32 vcc, 3, v2\nv_cndmask_b32 v60, v60, v63, vcc')
    RED=36864
    a('v_lshlrev_b32 v5, 2, v0')
    a('s_lshl_b32 s23, s3, 8')
    a('v_add_u32 v61, s23, v5')
    a('ds_write_b32 v61, v60 offset:%d'%RED)
    a('s_waitcnt lgkmcnt(0)\ns_barrier')
    stamp(a,3)
    for q in range(4): a('ds_read2st64_b32 v[%d:%d], v5 offset0:%d offset1:%d'%(60+2*q,61+2*q,RED//256+2*q,RED//256+2*q+1))
    a('ds_read_b32 v68, v5 offset:%d'%(RED+2048))
    a('s_waitcnt lgkmcnt(0)')
    a('v_add_f32 v60, v60, v61\nv_add_f32 v62, v62, v63\nv_add_f32 v64, v64, v65\nv_add_f32 v66, v66, v67')
    a('v_add_f32 v60, v60, v62\nv_add_f32 v64, v64, v66\nv_add_f32 v60, v60, v68\nv_add_f32 v60, v60, v64')
    dpp_quad(a,'mov',61,60,0,(2,3,2,3)); dpp_quad(a,'mov',60,60,0,(0,1,0,1))
    a('v_mul_f32 v60, %s, v60'%fhex(1/576.))
    a('v_mul_f32 v62, v60, v60')
    a('v_fma_f32 v61, v61, v%d, -v62'%63 if False else 'v_mov_b32 v63, %s'%fhex(1/576.))
    a('v_fma_f32 v61, v61, v63, -v62')
    a('v_max_f32 v61, 0, v61')
    a('v_add_f32 v61, %s, v61'%fhex(1e-5))
    a('v_rsq_f32 v62, v61')
    a('v_mul_f32 v63, v60, v62')
    a('v_mul_f32 v63, -2.0, v63')
    lab=a.newlabel('Lns')
    a('s_or_b32 s23, s19, s3\ns_cmp_lg_u32 s23, 0\ns_cbranch_scc1 %s'%lab)
    a('v_lshl_add_u32 v65, v2, 8, v6\nv_add_u32 v65, s17, v65\nv_lshlrev_b32 v65, 2, v65')
    a('s_lshr_b32 s23, s16, 1\ns_lshl_b32 s23, s23, 11\ns_and_b32 s24, s16, 1\ns_lshl_b32 s24, s24, 9\ns_add_u32 s23, s23, s24')
    a('s_lshl_b32 s24, s18, 6\ns_add_u32 s23, s23, s24')
    a('v_lshlrev_b32 v64, 10, v2\nv_lshl_add_u32 v64, v1, 2, v64\nv_add_u32 v64, s23, v64')
    a('v_mul_f32 v66, v61, v62')
    a('v_mul_f32 v67, %s, v62'%fhex(2.0**-11))
    a('s_mov_b32 s23, 0x%x'%L.STAT)
    a('s_mov_b32 exec_lo, 0x33333333\ns_mov_b32 exec_hi, 0x33333333')
    a('buffer_store_dword v67, v64, s[12:15], s23 offen')
    a('s_add_u32 s23, s23, 8192')
    a('buffer_store_dword v60, v65, s[12:15], s23 offen')
    a('s_add_u32 s23, s23, 8192')
    a('buffer_store_dword v66, v65, s[12:15], s23 offen')
    a('s_mov_b64 exec, -1')
    a.flush_hazards()
    a.label(lab)
    dpp_quad(a,'mov',64,62,0,(1,1,1,1)); dpp_quad(a,'mov',65,63,0,(1,1,1,1))
    dpp_quad(a,'mov',62,62,0,(0,0,0,0)); dpp_quad(a,'mov',63,63,0,(0,0,0,0))
    a('s_lshl_b32 s23, s3, 10')
    a('v_lshlrev_b32 v5, 8, v2\nv_lshl_add_u32 v5, v1, 4, v5\nv_add_u32 v5, s23, v5')
    a('s_mov_b32 s31, 0xffff0000')
    for tt in range(2):
        rs_=62+2*tt
        lo=8+tt*8; hi=lo+4
        for q in range(0,4,2):
            for u in range(2):
                b=66+6*u
                a('v_lshlrev_b32 v%d, 16, v%d\nv_and_b32 v%d, s31, v%d\nv_lshlrev_b32 v%d, 16, v%d\nv_and_b32 v%d, s31, v%d'%(b,lo+q+u,b+1,lo+q+u,b+2,hi+q+u,b+3,hi+q+u))
            for u in range(2):
                b=66+6*u
                a(pk('add',b+4,b,b+2)); a(pk('add',b,b,b+2,ny=True))
            for u in range(2):
                b=66+6*u
                a('v_pk_fma_f32 v[%d:%d], v[%d:%d], v[%d:%d], v[%d:%d] op_sel:[0,0,1] op_sel_hi:[1,0,1]'%(b+4,b+5,b+4,b+5,rs_,rs_+1,rs_,rs_+1))
                a(pk('mul',b,b,rs_,by=True))
            for u in range(2):
                b=66+6*u
                a('v_cvt_pk_bf16_f32 v%d, v%d, v%d\nv_cvt_pk_bf16_f32 v%d, v%d, v%d'%(lo+q+u,b+4,b+5,hi+q+u,b,b+1))
        a('ds_write_b128 v5, v[%d:%d] offset:%d'%(lo,lo+3,tt*18432))
        a('ds_write_b128 v5, v[%d:%d] offset:%d'%(hi,hi+3,tt*18432+9216))
    a('s_cmp_ge_u32 s22, 18\ns_cselect_b32 s23, 9216, 0')
    a('v_add_u32 v3, s23, v3')
    a('s_lshl_b32 s23, s22, 4\nv_add_u32 v1, s23, v1\nv_lshlrev_b32 v1, 12, v1')
    a('v_lshl_add_u32 v1, v2, 4, v1')
    a('s_lshl_b32 s25, s3, 10\ns_add_u32 s25, s25, 40960')
    a('v_and_b32 v2, 15, v0\nv_lshlrev_b32 v2, 6, v2\nv_and_b32 v7, 0x30, v0\nv_add3_u32 v2, v2, v7, s25')
    a('v_lshlrev_b32 v0, 4, v0\nv_add_u32 v0, s25, v0')
    a('s_lshl_b32 s23, s16, 9\ns_lshl_b32 s24, s18, 6\ns_add_u32 s23, s23, s24')
    if L.XDT: a('s_add_u32 s23, s23, 0x%x'%L.XDT)
    a('s_waitcnt lgkmcnt(0)\ns_barrier')
    stamp(a,4)
    ring=[8,12,16,20,60,64,68,72]
    tags={}
    def rd(n):
        ks,tt=n>>1,n&1; r=ring[n%8]
        a('ds_read_b128 v[%d:%d], v3 offset:%d'%(r,r+3,tt*18432+ks*1024)); tags[n]=a.lg
    for n in range(8): rd(n)
    for n in range(18):
        ks,tt=n>>1,n&1; r=ring[n%8]; d=(76,4)[tt]
        a.wait_lg(tags[n])
        a('v_mfma_f32_16x16x32_bf16 v[%d:%d], v[%d:%d], v[%d:%d], %s'%(d,d+3,r,r+3,24+4*ks,27+4*ks,'0' if ks==0 else 'v[%d:%d]'%(d,d+3)))
        if n+8<18: rd(n+8)
    a('v_cvt_pk_bf16_f32 v8, v76, v77\nv_cvt_pk_bf16_f32 v9, v78, v79\nv_cvt_pk_bf16_f32 v10, v4, v5\nv_cvt_pk_bf16_f32 v11, v6, v7')
    a('ds_write_b128 v2, v[8:11]\ns_waitcnt lgkmcnt(0)\nds_read_b128 v[12:15], v0\ns_waitcnt lgkmcnt(0)')
    stamp(a,5)
    a('buffer_store_dwordx4 v[12:15], v1, s[12:15], s23 offen')
    stamp_end(a,0)
    a('s_endpgm')
    a.label('K1_side'); a.reset_hist()
    a('s_cmp_ge_u32 s2, 288\ns_cbranch_scc1 K1_exit')
    srd(a,16,8,2048*578); srd(a,20,16,2048*578)
    a('s_and_b32 s24, s2, 1\ns_bfe_u32 s25, s2, 0x20001\ns_bfe_u32 s30, s2, 0x20003')
    a('s_mul_i32 s26, s30, 9\ns_add_u32 s26, s26, s3')
    a('s_lshl_b32 s27, s24, 5\ns_lshl_b32 s28, s25, 9\ns_add_u32 s27, s27, s28\ns_mul_i32 s27, s27, 578')
    a('s_mul_i32 s28, s30, 144\ns_add_u32 s27, s27, s28\ns_add_u32 s27, s27, 2')
    a('s_lshl_b32 s28, s3, 8\ns_lshl_b32 s29, s3, 12')
    for i in range(4):
        a('v_add_u32 v1, s28, v0')
        if i<3: a('s_add_u32 s28, s28, 64')
        a('v_mul_u32_u24 v2, 7282, v1\nv_lshrrev_b32 v2, 16, v2')
        a('v_mul_u32_u24 v3, 9, v2\nv_sub_u32 v1, v1, v3')
        a('v_and_b32 v3, 0xe0, v2\nv_add_u32 v2, v2, v3\nv_mul_u32_u24 v2, 578, v2')
        a('v_lshl_add_u32 v%d, v1, 4, v2'%(4+i))
    a('s_waitcnt lgkmcnt(0)')
    for i in range(4):
        a('s_add_u32 m0, s29, %d'%(1024*i))
        a('buffer_load_dwordx4 v%d, s[16:19], s27 offen lds'%(4+i))
        a('s_add_u32 m0, s29, %d'%(1024*i+36864))
        a('buffer_load_dwordx4 v%d, s[20:23], s27 offen lds'%(4+i))
    stamp(a,1)
    a('v_and_b32 v1, 31, v0\nv_lshrrev_b32 v2, 5, v0\nv_lshl_add_u32 v1, v2, 7, v1\nv_mul_u32_u24 v1, 144, v1')
    a('s_lshl_b32 s28, s3, 4\nv_add_u32 v1, s28, v1')
    a('s_lshl_b32 s28, s26, 15\ns_lshl_b32 s29, s24, 12\ns_add_u32 s28, s28, s29\ns_lshl_b32 s29, s25, 10\ns_add_u32 s28, s28, s29')
    a('s_add_u32 s28, s28, 0x%x'%L.WT)
    a('s_add_u32 s29, s28, %d'%(144*8192))
    a('s_mov_b32 s42, 0x%x\ns_mov_b32 s43, 0x%x'%(LO,HI))
    a('v_lshlrev_b32 v3, 4, v0')
    a('s_waitcnt vmcnt(0)')
    stamp(a,2)
    a('s_barrier')
    stamp(a,3)
    for r in range(4):
        a('ds_read_b128 v[%d:%d], v1 offset:%d'%(8+4*r,11+4*r,4608*r))
        a('ds_read_b128 v[%d:%d], v1 offset:%d'%(24+4*r,27+4*r,4608*r+36864))
    a('s_waitcnt lgkmcnt(0)')
    stamp(a,4)
    for t in range(8):
        o=40+4*t
        for r in range(4): a('v_perm_b32 v%d, v%d, v%d, s%d'%(o+r,24+4*r+(t>>1),8+4*r+(t>>1),43 if t&1 else 42))
        sb=28 if t&1 else 29
        a('buffer_store_dwordx4 v[%d:%d], v3, s[12:15], s%d offen'%(o,o+3,sb))
        a('s_add_u32 s%d, s%d, 8192'%(sb,sb))
    stamp(a,5)
    stamp_end(a,0)
    a.label('K1_exit')
    a('s_endpgm')
    return dict(name=name,grid=288,block=576,lds=73728,vgpr=80)
```

```python
import sys, common
from asm import *
NAME='sequential_preLN__spectral_gfnet__mixer_s_mlp__prompt'
def build(path, kernels, stamps=False):
    common.STAMPS=stamps
    a=Asm()
    a.raw('CODE_START:')
    ks=[k(a) for k in kernels]
    a.raw('CODE_END:')
    hdr=open('cdna_kernels/%s.s.ref'%NAME).read().split('; Override launch')[0]
    s=hdr
    for k in ks: s+='; @launch kernel=%s grid=(%d,1,1) block=(%d,1,1) lds=%d\n'%(k['name'],k['grid'],k['block'],k['lds'])
    s+='.amdgcn_target "amdgcn-amd-amdhsa--gfx950"\n.text\n.p2align 8\n'+a.text()
    seen=set()
    for k in ks:
        if k['name'] in seen: continue
        seen.add(k['name']); s+=kernel_desc(k['name'],k['vgpr'],k.get('sgpr',96),k.get('accum'))
    open(path,'w').write(s)
    print('wrote',path,len(s),'bytes; nops inserted',a.nnop)
if __name__=='__main__':
    from k1 import k1
    ks=[k1]
    for m in ('k2','k3','k4'):
        try:
            mod=__import__(m); ks+=mod.KERNELS
        except ImportError as e: print('missing',m)
    import os
    tag=os.environ.get('TAG')
    if tag:
        build('devst_%s.s'%tag,ks,stamps=True)
        build('v_%s.s'%tag,ks,stamps=False)
    else:
        build('dev.s',ks,stamps=False)
        build('devst.s',ks,stamps=True)
        build('cdna_kernels/%s.s'%NAME,ks,stamps=False)
```

```python
import sys, common
from asm import *
NAME='sequential_preLN__spectral_gfnet__mixer_s_mlp__prompt'
def build(path, kernels, stamps=False):
    common.STAMPS=stamps
    a=Asm()
    a.raw('CODE_START:')
    ks=[k(a) for k in kernels]
    a.raw('CODE_END:')
    hdr=open('cdna_kernels/%s.s.ref'%NAME).read().split('; Override launch')[0]
    s=hdr
    for k in ks: s+='; @launch kernel=%s grid=(%d,1,1) block=(%d,1,1) lds=%d\n'%(k['name'],k['grid'],k['block'],k['lds'])
    s+='.amdgcn_target "amdgcn-amd-amdhsa--gfx950"\n.text\n.p2align 8\n'+a.text()
    seen=set()
    for k in ks:
        if k['name'] in seen: continue
        seen.add(k['name']); s+=kernel_desc(k['name'],k['vgpr'],k.get('sgpr',96),k.get('accum'))
    open(path,'w').write(s)
    print('wrote',path,len(s),'bytes; nops inserted',a.nnop)
if __name__=='__main__':
    from k1 import k1
    ks=[k1]
    for m in ('k2','k3','k4'):
        try:
            mod=__import__(m); ks+=mod.KERNELS
        except ImportError as e: print('missing',m)
    import os
    def nopk(a):
        if 'nop_kernel:' not in a.text():
            a.raw(kernel_head('nop_kernel')); a('s_endpgm')
        return dict(name='nop_kernel',grid=int(os.environ.get('NOPG','1')),block=64,lds=0,vgpr=8)
    ks+= [nopk]*int(os.environ.get('NNOP','0'))
    ks=[nopk]*int(os.environ.get('NNOP0','0'))+ks
    tag=os.environ.get('TAG')
    if tag:
        build('devst_%s.s'%tag,ks,stamps=True)
        build('v_%s.s'%tag,ks,stamps=False)
    else:
        build('dev.s',ks,stamps=False)
        build('devst.s',ks,stamps=True)
        build('cdna_kernels/%s.s'%NAME,ks,stamps=False)
```

```python
from asm import *
import layout as L
import math
STAMPS=False
WS_SIZE = L.WS_USED
LO=0x05040100; HI=0x07060302

def srd(a, s, karg, size):
    a('s_load_dwordx2 s[%d:%d], s[0:1], %d'%(s,s+1,karg))
    a('s_mov_b32 s%d, 0x%x'%(s+2,size))
    a('s_mov_b32 s%d, 0x20000'%(s+3))

import os
def OPT(name, default=0):
    return int(os.environ.get(name, default))
NST=7
def stamp_begin(a):
    if STAMPS:
        a('s_memrealtime s[76:77]')
        for i in range(1,NST): a('s_mov_b64 s[%d:%d], 0'%(76+2*i,77+2*i))
def stamp(a, i):
    if STAMPS and not (OPT('CLK') and i in (3,4)):
        a('s_memrealtime s[%d:%d]'%(76+2*i,77+2*i)); a('s_waitcnt lgkmcnt(0)')
def stamp_clk(a, i):
    if STAMPS and OPT('CLK'):
        a('s_memtime s[%d:%d]'%(76+2*i,77+2*i)); a('s_waitcnt lgkmcnt(0)')
def stamp_end(a, kidx, ws=12, wave=0):
    if not STAMPS: return
    a('s_waitcnt vmcnt(0) lgkmcnt(0)')
    a('s_memrealtime s[%d:%d]'%(76+2*(NST-1),77+2*(NST-1)))
    a('s_waitcnt lgkmcnt(0)')
    if OPT('DBG') and kidx==0:
        a('s_load_dwordx2 s[68:69], s[0:1], 72\ns_mov_b32 s70, 256\ns_mov_b32 s71, 0x20000')
        a('s_cmp_ge_u32 s2, 256\ns_cselect_b32 s74, 32, 0\ns_mov_b64 exec, 1\ns_waitcnt lgkmcnt(0)')
        for i in range(1,NST):
            a('s_sub_u32 s75, s%d, s76\nv_mov_b32 v4, s75\nv_mov_b32 v1, s74'%(76+2*i))
            a('buffer_atomic_umax v4, v1, s[68:71], 0 offen offset:%d'%(4*i))
        a('s_waitcnt vmcnt(0)')
        return
    if OPT('DBG'): return
    for i in range(2*NST): a('v_mov_b32 v%d, s%d'%(4+i,76+i))
    a('v_mov_b32 v18, 0\nv_mov_b32 v19, 0')
    a('s_lshl_b32 s74, s2, 10\ns_lshl_b32 s75, s3, 6\ns_add_u32 s74, s74, s75')
    a('s_add_u32 s74, s74, 0x%x'%(L.STAMP+kidx*524288))
    a('v_mov_b32 v1, s74')
    a('s_mov_b64 exec, 1')
    for q in range(4): a('buffer_store_dwordx4 v[%d:%d], v1, s[%d:%d], 0 offen offset:%d'%(4+4*q,7+4*q,ws,ws+3,16*q))
    a('s_waitcnt vmcnt(0)')

def wave_id(a, sdst=3, vlane=0):
    a('v_lshrrev_b32 v1, 6, v0')
    a('v_readfirstlane_b32 s%d, v1'%sdst)
    a('v_and_b32 v%d, 63, v0'%vlane)

def pk(op,d,x,y,z=None,bx=False,by=False,bz=False,nx=False,ny=False,nz=False):
    f=lambda r: r if isinstance(r,str) else 'v[%d:%d]'%(r,r+1)
    ops=[x,y]+([z] if z is not None else []); bs=[bx,by,bz][:len(ops)]; ns=[nx,ny,nz][:len(ops)]
    t='v_pk_%s_f32 %s, %s'%(op,f(d),', '.join(f(o) for o in ops))
    if any(bs): t+=' op_sel_hi:[%s]'%','.join('0' if b else '1' for b in bs)
    if any(ns):
        n=','.join('1' if b else '0' for b in ns); t+=' neg_lo:[%s] neg_hi:[%s]'%(n,n)
    return t

def cheb_gen(a, frag0, nfr, c0, c1, vfk, vph0, vc2, vamp, step_mul, ssc, emul=None, fix=None):
    for r in (vfk,vph0,vc2,vamp,c0,c1): assert r%2==0
    adds=[ad for m,ad in emul]
    if any(adds):
        assert adds==[0.0,0.25]*4
        a('v_add_f32 v%d, %s, v%d'%(vph0+1,fhex(0.25),vph0))
    for p in range(4):
        a('s_mov_b32 s%d, %s\ns_mov_b32 s%d, %s'%(ssc,fhex(float(emul[2*p][0])),ssc+1,fhex(float(emul[2*p+1][0]))))
        a(pk('fma',c0+2*p,vfk,'s[%d:%d]'%(ssc,ssc+1),vph0,bx=True,bz=not any(adds)))
    a('v_mul_f32 v%d, %s, v%d'%(vc2,fhex(float(step_mul)),vfk))
    for p in range(4): a(pk('add',c1+2*p,c0+2*p,vc2,by=True))
    a('v_cos_f32 v%d, v%d'%(vc2,vc2))
    for e in range(8): a('v_cos_f32 v%d, v%d'%(c0+e,c0+e))
    for e in range(8): a('v_cos_f32 v%d, v%d'%(c1+e,c1+e))
    a('v_add_f32 v%d, v%d, v%d'%(vc2,vc2,vc2))
    for p in range(4): a(pk('mul',c0+2*p,c0+2*p,vamp,by=True))
    for p in range(4): a(pk('mul',c1+2*p,c1+2*p,vamp,by=True))
    cur=[c0,c1]
    for n in range(nfr):
        c=cur[n&1]
        if n>=2:
            o=cur[(n+1)&1]
            for p in range(4): a(pk('fma',c+2*p,o+2*p,vc2,c+2*p,by=True,nz=True))
        regs=[c+e for e in range(8)]
        if fix: regs=fix(n,regs)
        for p in range(4): a('v_cvt_pk_bf16_f32 v%d, v%d, v%d'%(frag0+4*n+p,regs[2*p],regs[2*p+1]))

def g1_setup(a, s_nt, vlane, vfk, vph0, vamp, t0, t1, ssc):
    a('s_lshl_b32 s%d, s%d, 4'%(ssc,s_nt))
    a('s_cmp_lt_u32 s%d, 18'%s_nt)
    a('s_cselect_b32 s%d, 2, -287'%(ssc+1))
    a('s_add_i32 s%d, s%d, s%d'%(ssc,ssc,ssc+1))
    a('v_and_b32 v%d, 14, v%d'%(t0,vlane))
    a('v_add_u32 v%d, s%d, v%d'%(t0,ssc,t0))
    a('v_cvt_f32_u32 v%d, v%d'%(vfk,t0))
    a('v_mul_f32 v%d, %s, v%d'%(vfk,fhex(1/576.),vfk))
    a('v_cmp_eq_u32 vcc, 288, v%d'%t0)
    a('v_mov_b32 v%d, %s'%(vamp,fhex(math.sqrt(2/576.))))
    a('v_mov_b32 v%d, %s'%(t1,fhex(math.sqrt(1/576.))))
    a('v_cndmask_b32 v%d, v%d, v%d, vcc'%(vamp,vamp,t1))
    a('v_and_b32 v%d, 1, v%d'%(t0,vlane))
    a('v_cvt_f32_u32 v%d, v%d'%(t0,t0))
    a('v_mul_f32 v%d, 0.25, v%d'%(vph0,t0) if False else 'v_mul_f32 v%d, %s, v%d'%(vph0,fhex(0.25),t0))
    a('v_lshrrev_b32 v%d, 4, v%d'%(t0,vlane))
    a('v_lshlrev_b32 v%d, 3, v%d'%(t0,t0))
    a('v_cvt_f32_u32 v%d, v%d'%(t0,t0))
    a('v_fmac_f32 v%d, v%d, v%d'%(vph0,t0,vfk))
G1_E=[(e,0.0) for e in range(8)]

def code_prefetch(a, sp, sidx, start_label):
    lab=a.newlabel('Lpc')
    a('s_getpc_b64 s[%d:%d]'%(sp,sp+1))
    a.label(lab)
    a('s_sub_u32 s%d, s%d, %s-%s'%(sp,sp,lab,start_label))
    a('s_subb_u32 s%d, s%d, 0'%(sp+1,sp+1))
    a('s_lshl_b32 s%d, s%d, 8'%(sp+2,sidx))
    a('s_min_u32 s%d, s%d, CODE_END-%s-256'%(sp+2,sp+2,start_label))
    a('s_add_u32 s%d, s%d, s%d\ns_addc_u32 s%d, s%d, 0'%(sp,sp,sp+2,sp+1,sp+1))
    a('s_load_dword s%d, s[%d:%d], 0\ns_load_dword s%d, s[%d:%d], 128'%(sp+3,sp,sp+1,sp+4,sp,sp+1))

def dpp_quad(a, op, d, x, y, perm):
    q='quad_perm:[%d,%d,%d,%d] row_mask:0xf bank_mask:0xf'%tuple(perm)
    if op=='mov': a('v_mov_b32_dpp v%d, v%d %s'%(d,x,q))
    else: a('v_%s_f32_dpp v%d, v%d, v%d %s'%(op,d,x,y,q))

def nat_voffs(a, rs, ve, vo, t0, t1):
    a('v_lshrrev_b32 v%d, 3, v0'%t0)
    a('v_and_b32 v%d, 2, v%d'%(t1,t0))
    a('v_and_b32 v%d, 7, v0'%ve)
    a('v_xor_b32 v%d, v%d, v%d'%(ve,ve,t1))
    a('v_lshlrev_b32 v%d, 4, v%d'%(ve,ve))
    a('v_mul_u32_u24 v%d, %d, v%d'%(t0,rs,t0))
    a('v_xor_b32 v%d, 64, v%d'%(vo,ve))
    a('v_add_u32 v%d, v%d, v%d\nv_add_u32 v%d, v%d, v%d'%(ve,ve,t0,vo,vo,t0))
def nat_dma(a, srd_, rs, ve, vo, s_src, s_lds):
    for n in range(8):
        a('s_mov_b32 m0, s%d'%s_lds)
        a('buffer_load_dwordx4 v%d, s[%d:%d], s%d offen lds'%(vo if n&1 else ve,srd_,srd_+3,s_src))
        a('s_add_u32 s%d, s%d, 1024\ns_add_u32 s%d, s%d, %d'%(s_lds,s_lds,s_src,s_src,8*rs))
def tr_addr(a, va, t0, t1):
    a('v_lshrrev_b32 v%d, 4, v0'%t0)
    a('v_bfe_u32 v%d, v0, 2, 2'%t1)
    a('v_lshl_add_u32 v%d, v%d, 3, v%d'%(va,t0,t1))
    a('v_lshlrev_b32 v%d, 7, v%d'%(va,va))
    a('v_and_b32 v%d, 1, v%d\nv_lshlrev_b32 v%d, 1, v%d'%(t0,t0,t0,t0))
    a('v_lshrrev_b32 v%d, 1, v%d\nv_or_b32 v%d, v%d, v%d'%(t1,t1,t0,t0,t1))
    a('v_lshl_add_u32 v%d, v%d, 5, v%d'%(va,t0,va))
    a('v_and_b32 v%d, 3, v0\nv_lshl_add_u32 v%d, v%d, 3, v%d'%(t1,va,t1,va))
    for tl in range(1,4): a('v_xor_b32 v%d, %d, v%d'%(va+tl,32*tl,va))
def tr_frag(a, dst, va, tl, off):
    a('ds_read_b64_tr_b16 v[%d:%d], v%d offset:%d'%(dst,dst+1,va+tl,off))
    a('ds_read_b64_tr_b16 v[%d:%d], v%d offset:%d'%(dst+2,dst+3,va+tl,off+512))

def repack_tasks(a, ntask, srd_, rs, src_off, dst_off, ws, swave, kstep):
    nat_voffs(a,rs,1,2,3,4)
    a('s_mul_i32 s44, s%d, %d'%(swave,8192*ntask))
    a('s_mov_b32 s41, s44')
    tags=[]
    for i in range(ntask):
        src_off(a,i,40)
        nat_dma(a,srd_,rs,1,2,40,41); tags.append(a.vm)
    tr_addr(a,8,3,4)
    for tl in range(4): a('v_add_u32 v%d, s44, v%d'%(8+tl,8+tl))
    a('v_lshlrev_b32 v3, 4, v0')
    for i in range(ntask):
        a.wait_vm(tags[i])
        b=16+32*(i&1)
        lt={}
        for tl in range(4):
            for ksl in range(2):
                tr_frag(a,b+8*tl+4*ksl,8,tl,i*8192+ksl*4096)
            lt[tl]=a.lg
        for tl in range(4):
            dst_off(a,i,tl,42)
            a.wait_lg(lt[tl])
            a('buffer_store_dwordx4 v[%d:%d], v3, s[%d:%d], s42 offen'%(b+8*tl,b+8*tl+3,ws,ws+3))
            a('buffer_store_dwordx4 v[%d:%d], v3, s[%d:%d], s42 offen offset:%d'%(b+8*tl+4,b+8*tl+7,ws,ws+3,kstep))

def div9(a, q, r, x):
    a('s_mul_i32 s%d, s%d, 7282\ns_lshr_b32 s%d, s%d, 16\ns_mul_i32 s%d, s%d, 9\ns_sub_u32 s%d, s%d, s%d'%(q,x,q,q,r,q,r,x,r))

def w34_job(a, which, ntask, s_t0, srd_, swave):
    for i in range(ntask):
        b=48+4*i
        a('s_add_u32 s45, s%d, %d'%(s_t0,i))
        div9(a,b,b+1,45)
        div9(a,b+2,b+3,b)
    rs=9216 if which==3 else 1152
    def src(a,i,sd):
        b=48+4*i; cg,kg=(b,b+1) if which==3 else (b+1,b)
        a('s_mul_i32 s%d, s%d, %d\ns_lshl_b32 s45, s%d, 7\ns_add_u32 s%d, s%d, s45'%(sd,kg,64*rs,cg,sd,sd))
    def dst(a,i,tl,sd):
        b=48+4*i; tg,kg=(b+3,b+1) if which==3 else (b+1,b+3)
        a('s_lshl_b32 s45, s%d, 2\ns_add_u32 s45, s45, %d'%(tg,tl))
        a('s_mul_i32 s46, s45, 43\ns_lshr_b32 s46, s46, 7\ns_mul_i32 s46, s46, 105\ns_add_u32 s45, s45, s46')
        a('s_mul_i32 s46, s%d, 1296\ns_add_u32 s45, s45, s46\ns_mul_i32 s46, s%d, 6\ns_add_u32 s45, s45, s46'%(b+2,kg))
        a('s_lshl_b32 s45, s45, 10\ns_add_u32 s%d, s45, 0x%x'%(sd,L.W34R+(0 if which==3 else 54*1024)))
    repack_tasks(a,ntask,srd_,rs,src,dst,12,swave,3072)

def dma_tile(a, srd_, voff, s_goff, s_tmp, nwaves, swave, nfrag=72, lds0=0, voffs=None):
    per=nfrag//nwaves
    assert per*nwaves==nfrag
    a('s_mul_i32 s%d, s%d, %d'%(s_tmp,swave,per*1024))
    a('s_add_u32 s%d, s%d, s%d'%(s_goff,s_goff,s_tmp))
    if lds0: a('s_add_u32 s%d, s%d, %d'%(s_tmp,s_tmp,lds0))
    for n in range(per):
        if n%4==0:
            if n:
                a('s_add_u32 s%d, s%d, 4096'%(s_tmp,s_tmp)); a('s_add_u32 s%d, s%d, 4096'%(s_goff,s_goff))
            a('s_mov_b32 m0, s%d'%s_tmp)
        a('buffer_load_dwordx4 v%d, s[%d:%d], s%d offen offset:%d lds'%(voff,srd_,srd_+3,s_goff,(n%4)*1024))

def gemm_core(a, wreg, acc, first, ring, vb0, vb1, wwait=None, hook=None, ntt=4, nks=18, rdfrag=None):
    N=ntt*nks; tags={}
    def rd(n):
        ks,tt=divmod(n,ntt); r=ring[n%len(ring)]
        vb=vb0 if tt<2 else vb1
        if rdfrag: rdfrag(a,r,tt,ks)
        else: a('ds_read_b128 v[%d:%d], v%d offset:%d'%(r,r+3,vb,(tt&1)*18432+ks*1024))
        tags[n]=a.lg
    depth=len(ring)
    for n in range(min(depth,N)): rd(n)
    for n in range(N):
        ks,tt=divmod(n,ntt); r=ring[n%depth]; d=acc(tt,ks); w=wreg(ks)
        if tt==0 and wwait: wwait(ks)
        a.wait_lg(tags[n])
        a('v_mfma_f32_16x16x32_bf16 v[%d:%d], v[%d:%d], v[%d:%d], %s'%(d,d+3,w,w+3,r,r+3,'0' if first(ks) else 'v[%d:%d]'%(d,d+3)))
        if hook: hook(tt,ks,r)
        if n+depth<N: rd(n+depth)

def gl_store_voff(a, vdst, t0):
    a('v_bfe_u32 v%d, v0, 4, 1'%t0)
    a('v_mul_u32_u24 v%d, 18432, v%d'%(vdst,t0))
    a('v_lshrrev_b32 v%d, 5, v0'%t0)
    a('v_lshl_add_u32 v%d, v%d, 8, v%d'%(vdst,t0,vdst))
    a('v_and_b32 v%d, 15, v0'%t0)
    a('v_lshl_add_u32 v%d, v%d, 4, v%d'%(vdst,t0,vdst))

def pack_swap(a, dst, accA, accB):
    a('v_cvt_pk_bf16_f32 v%d, v%d, v%d'%(dst,accA,accA+1))
    a('v_cvt_pk_bf16_f32 v%d, v%d, v%d'%(dst+1,accA+2,accA+3))
    a('v_cvt_pk_bf16_f32 v%d, v%d, v%d'%(dst+2,accB,accB+1))
    a('v_cvt_pk_bf16_f32 v%d, v%d, v%d'%(dst+3,accB+2,accB+3))
    a('v_permlane16_swap_b32 v%d, v%d'%(dst,dst+2))
    a('v_permlane16_swap_b32 v%d, v%d'%(dst+1,dst+3))

GK0=-2*0.7978845608028654*1.4426950408889634
GK1=GK0*0.044715
def gelu_inplace(a, r0, n, t0, sk):
    P=range(0,n,2)
    for p in P: a(pk('mul',t0+p,r0+p,r0+p))
    for p in P: a('v_pk_fma_f32 v[%d:%d], v[%d:%d], s[%d:%d], s[%d:%d] op_sel:[0,0,1] op_sel_hi:[1,0,1]'%(t0+p,t0+p+1,t0+p,t0+p+1,sk,sk+1,sk,sk+1))
    for p in P: a(pk('mul',t0+p,t0+p,r0+p))
    for e in range(n): a('v_exp_f32 v%d, v%d'%(t0+e,t0+e))
    for p in P: a(pk('add',t0+p,t0+p,'1.0',by=True))
    for e in range(n): a('v_rcp_f32 v%d, v%d'%(t0+e,t0+e))
    for p in P: a(pk('mul',r0+p,r0+p,t0+p))
def gelu_consts(a, sk):
    a('s_mov_b32 s%d, %s\ns_mov_b32 s%d, %s'%(sk,fhex(GK1),sk+1,fhex(GK0)))
```

```python
from common import *

def k1(a):
    name='k1_kernel'
    a.raw(kernel_head(name)); a.reset_hist()
    stamp_begin(a)
    srd(a,8,0,L.T)
    srd(a,12,80,WS_SIZE)
    wave_id(a)
    a('s_cmp_ge_u32 s2, 256')
    a('s_cbranch_scc1 K1_side')
    a('s_and_b32 s16, s2, 7\ns_bfe_u32 s18, s2, 0x30003\ns_lshr_b32 s19, s2, 6')
    a('s_lshr_b32 s17, s16, 1\ns_lshl_b32 s17, s17, 4\ns_and_b32 s20, s16, 1\ns_lshl_b32 s20, s20, 2\ns_add_u32 s17, s17, s20')
    a('s_lshl_b32 s17, s17, 5\ns_lshl_b32 s20, s18, 2\ns_add_u32 s17, s17, s20')
    a('s_mul_i32 s20, s17, 1152')
    a('s_lshl_b32 s21, s3, 6\ns_add_u32 s20, s20, s21\ns_add_u32 s21, s20, 294912')
    a('v_lshrrev_b32 v1, 2, v0\nv_and_b32 v2, 3, v0')
    a('v_and_b32 v4, 3, v1\nv_lshlrev_b32 v4, 5, v4\nv_lshrrev_b32 v6, 4, v0\nv_add_u32 v6, v4, v6')
    a('v_mul_u32_u24 v4, 1152, v6\nv_lshl_add_u32 v4, v2, 4, v4')
    a('s_waitcnt lgkmcnt(0)')
    for tt in range(2):
        for p in range(2):
            r=8+(tt*2+p)*4
            a('buffer_load_dwordx4 v[%d:%d], v4, s[8:11], s%d offen offset:%d'%(r,r+3,20+tt,576*p))
    xtag=a.vm
    a('s_lshr_b32 s23, s2, 3\ns_mul_i32 s23, s23, 9\ns_add_u32 s23, s23, s3')
    code_prefetch(a,32,23,'CODE_START')
    a('s_mul_i32 s22, s19, 9\ns_add_u32 s22, s22, s3')
    g1_setup(a,22,0,76,78,4,60,61,24)
    cheb_gen(a,24,9,60,68,76,78,78,4,32,24,emul=G1_E)
    a('s_mov_b32 s30, 0x3f803f80')
    a('v_lshrrev_b32 v3, 3, v0\nv_and_b32 v3, 6, v3\nv_xor_b32 v3, v3, v0\nv_lshlrev_b32 v3, 4, v3')
    for r in range(60,64): a('v_mov_b32 v%d, 0'%r)
    stamp(a,1)
    a.wait_vm(xtag)
    stamp(a,2)
    for q in range(8):
        for tt in range(2):
            x=8+tt*8+q
            a('v_dot2c_f32_bf16 v%d, s30, v%d'%(60+tt,x))
            a('v_dot2c_f32_bf16 v%d, v%d, v%d'%(62+tt,x,x))
    for perm in ((1,0,3,2),(2,3,0,1)):
        for r in range(60,64): dpp_quad(a,'add',r,r,r,perm)
    a('v_cmp_eq_u32 vcc, 1, v2\nv_cndmask_b32 v60, v60, v61, vcc\nv_cmp_eq_u32 vcc, 2, v2\nv_cndmask_b32 v60, v60, v62, vcc')
    a('v_cmp_eq_u32 vcc, 3, v2\nv_cndmask_b32 v60, v60, v63, vcc')
    RED=36864
    a('v_lshlrev_b32 v5, 2, v0')
    a('s_lshl_b32 s23, s3, 8')
    a('v_add_u32 v61, s23, v5')
    a('ds_write_b32 v61, v60 offset:%d'%RED)
    a('s_waitcnt lgkmcnt(0)\ns_barrier')
    stamp(a,3)
    for q in range(4): a('ds_read2st64_b32 v[%d:%d], v5 offset0:%d offset1:%d'%(60+2*q,61+2*q,RED//256+2*q,RED//256+2*q+1))
    a('ds_read_b32 v68, v5 offset:%d'%(RED+2048))
    a('s_waitcnt lgkmcnt(0)')
    a('v_add_f32 v60, v60, v61\nv_add_f32 v62, v62, v63\nv_add_f32 v64, v64, v65\nv_add_f32 v66, v66, v67')
    a('v_add_f32 v60, v60, v62\nv_add_f32 v64, v64, v66\nv_add_f32 v60, v60, v68\nv_add_f32 v60, v60, v64')
    dpp_quad(a,'mov',61,60,0,(2,3,2,3)); dpp_quad(a,'mov',60,60,0,(0,1,0,1))
    a('v_mul_f32 v60, %s, v60'%fhex(1/576.))
    a('v_mul_f32 v62, v60, v60')
    a('v_fma_f32 v61, v61, v%d, -v62'%63 if False else 'v_mov_b32 v63, %s'%fhex(1/576.))
    a('v_fma_f32 v61, v61, v63, -v62')
    a('v_max_f32 v61, 0, v61')
    a('v_add_f32 v61, %s, v61'%fhex(1e-5))
    a('v_rsq_f32 v62, v61')
    a('v_mul_f32 v63, v60, v62')
    a('v_mul_f32 v63, -2.0, v63')
    lab=a.newlabel('Lns')
    a('s_or_b32 s23, s19, s3\ns_cmp_lg_u32 s23, 0\ns_cbranch_scc1 %s'%lab)
    a('v_lshl_add_u32 v65, v2, 8, v6\nv_add_u32 v65, s17, v65\nv_lshlrev_b32 v65, 2, v65')
    a('s_lshr_b32 s23, s16, 1\ns_lshl_b32 s23, s23, 11\ns_and_b32 s24, s16, 1\ns_lshl_b32 s24, s24, 9\ns_add_u32 s23, s23, s24')
    a('s_lshl_b32 s24, s18, 6\ns_add_u32 s23, s23, s24')
    a('v_lshlrev_b32 v64, 10, v2\nv_lshl_add_u32 v64, v1, 2, v64\nv_add_u32 v64, s23, v64')
    a('v_mul_f32 v66, v61, v62')
    a('v_mul_f32 v67, %s, v62'%fhex(2.0**-11))
    a('s_mov_b32 s23, 0x%x'%L.STAT)
    a('s_mov_b32 exec_lo, 0x33333333\ns_mov_b32 exec_hi, 0x33333333')
    a('buffer_store_dword v67, v64, s[12:15], s23 offen')
    a('s_add_u32 s23, s23, 8192')
    a('buffer_store_dword v60, v65, s[12:15], s23 offen')
    a('s_add_u32 s23, s23, 8192')
    a('buffer_store_dword v66, v65, s[12:15], s23 offen')
    a('s_mov_b64 exec, -1')
    a.flush_hazards()
    a.label(lab)
    dpp_quad(a,'mov',64,62,0,(1,1,1,1)); dpp_quad(a,'mov',65,63,0,(1,1,1,1))
    dpp_quad(a,'mov',62,62,0,(0,0,0,0)); dpp_quad(a,'mov',63,63,0,(0,0,0,0))
    a('s_lshl_b32 s23, s3, 10')
    a('v_lshlrev_b32 v5, 1, v2\nv_xor_b32 v5, v5, v1\nv_lshlrev_b32 v5, 4, v5\nv_lshl_add_u32 v5, v2, 8, v5\nv_add_u32 v5, s23, v5')
    a('s_mov_b32 s31, 0xffff0000')
    for tt in range(2):
        rs_=62+2*tt
        lo=8+tt*8; hi=lo+4
        for q in range(0,4,2):
            for u in range(2):
                b=66+6*u
                a('v_lshlrev_b32 v%d, 16, v%d\nv_and_b32 v%d, s31, v%d\nv_lshlrev_b32 v%d, 16, v%d\nv_and_b32 v%d, s31, v%d'%(b,lo+q+u,b+1,lo+q+u,b+2,hi+q+u,b+3,hi+q+u))
            for u in range(2):
                b=66+6*u
                a(pk('add',b+4,b,b+2)); a(pk('add',b,b,b+2,ny=True))
            for u in range(2):
                b=66+6*u
                a('v_pk_fma_f32 v[%d:%d], v[%d:%d], v[%d:%d], v[%d:%d] op_sel:[0,0,1] op_sel_hi:[1,0,1]'%(b+4,b+5,b+4,b+5,rs_,rs_+1,rs_,rs_+1))
                a(pk('mul',b,b,rs_,by=True))
            for u in range(2):
                b=66+6*u
                a('v_cvt_pk_bf16_f32 v%d, v%d, v%d\nv_cvt_pk_bf16_f32 v%d, v%d, v%d'%(lo+q+u,b+4,b+5,hi+q+u,b,b+1))
        a('ds_write_b128 v5, v[%d:%d] offset:%d'%(lo,lo+3,tt*18432))
        a('ds_write_b128 v5, v[%d:%d] offset:%d'%(hi,hi+3,tt*18432+9216))
    a('s_cmp_ge_u32 s22, 18\ns_cselect_b32 s23, 9216, 0')
    a('v_add_u32 v3, s23, v3')
    a('s_lshl_b32 s23, s22, 4\nv_add_u32 v1, s23, v1\nv_lshlrev_b32 v1, 12, v1')
    a('v_lshl_add_u32 v1, v2, 4, v1')
    a('s_lshl_b32 s25, s3, 10\ns_add_u32 s25, s25, 40960')
    a('v_and_b32 v2, 15, v0\nv_lshlrev_b32 v2, 6, v2\nv_and_b32 v7, 0x30, v0\nv_add3_u32 v2, v2, v7, s25')
    a('v_lshlrev_b32 v0, 4, v0\nv_add_u32 v0, s25, v0')
    a('s_lshl_b32 s23, s16, 9\ns_lshl_b32 s24, s18, 6\ns_add_u32 s23, s23, s24')
    if L.XDT: a('s_add_u32 s23, s23, 0x%x'%L.XDT)
    a('s_waitcnt lgkmcnt(0)\ns_barrier')
    stamp(a,4)
    ring=[8,12,16,20,60,64,68,72]
    tags={}
    def rd(n):
        ks,tt=n>>1,n&1; r=ring[n%8]
        a('ds_read_b128 v[%d:%d], v3 offset:%d'%(r,r+3,tt*18432+ks*1024)); tags[n]=a.lg
    for n in range(8): rd(n)
    for n in range(18):
        ks,tt=n>>1,n&1; r=ring[n%8]; d=(76,4)[tt]
        a.wait_lg(tags[n])
        a('v_mfma_f32_16x16x32_bf16 v[%d:%d], v[%d:%d], v[%d:%d], %s'%(d,d+3,r,r+3,24+4*ks,27+4*ks,'0' if ks==0 else 'v[%d:%d]'%(d,d+3)))
        if n+8<18: rd(n+8)
    a('v_cvt_pk_bf16_f32 v8, v76, v77\nv_cvt_pk_bf16_f32 v9, v78, v79\nv_cvt_pk_bf16_f32 v10, v4, v5\nv_cvt_pk_bf16_f32 v11, v6, v7')
    a('ds_write_b128 v2, v[8:11]\ns_waitcnt lgkmcnt(0)\nds_read_b128 v[12:15], v0\ns_waitcnt lgkmcnt(0)')
    stamp(a,5)
    a('buffer_store_dwordx4 v[12:15], v1, s[12:15], s23 offen')
    stamp_end(a,0)
    a('s_endpgm')
    a.label('K1_side'); a.reset_hist()
    a('s_cmp_ge_u32 s2, 288\ns_cbranch_scc1 K1_exit')
    srd(a,16,8,2048*578); srd(a,20,16,2048*578)
    a('s_and_b32 s24, s2, 1\ns_bfe_u32 s25, s2, 0x20001\ns_bfe_u32 s30, s2, 0x20003')
    a('s_mul_i32 s26, s30, 9\ns_add_u32 s26, s26, s3')
    a('s_lshl_b32 s27, s24, 5\ns_lshl_b32 s28, s25, 9\ns_add_u32 s27, s27, s28\ns_mul_i32 s27, s27, 578')
    a('s_mul_i32 s28, s30, 144\ns_add_u32 s27, s27, s28')
    lab=a.newlabel('Lnodma')
    a('s_cmp_eq_u32 s3, 8\ns_waitcnt lgkmcnt(0)\ns_cbranch_scc1 %s'%lab)
    a('s_mul_i32 s28, s3, 320\ns_mul_i32 s29, s3, 5120')
    for i in range(5):
        a('v_add_u32 v1, s28, v0')
        if i<4: a('s_add_u32 s28, s28, 64')
        a('v_mul_u32_u24 v2, 6554, v1\nv_lshrrev_b32 v2, 16, v2')
        a('v_mul_u32_u24 v3, 10, v2\nv_sub_u32 v1, v1, v3')
        a('v_and_b32 v3, 0xe0, v2\nv_add_u32 v3, v2, v3\nv_mul_u32_u24 v3, 578, v3')
        a('v_and_b32 v2, 1, v2\nv_lshl_add_u32 v3, v2, 1, v3')
        a('v_lshl_add_u32 v4, v1, 4, v3')
        a('s_add_u32 m0, s29, %d'%(1024*i))
        a('buffer_load_dwordx4 v4, s[16:19], s27 offen lds')
        a('s_add_u32 m0, s29, %d'%(1024*i+40960))
        a('buffer_load_dwordx4 v4, s[20:23], s27 offen lds')
    a.flush_hazards(); a.label(lab)
    stamp(a,1)
    a('v_and_b32 v1, 31, v0\nv_lshrrev_b32 v2, 5, v0\nv_lshl_add_u32 v1, v2, 7, v1\nv_mul_u32_u24 v1, 160, v1')
    a('s_lshl_b32 s28, s3, 4\nv_add_u32 v1, s28, v1')
    a('v_and_b32 v2, 1, v0\nv_xor_b32 v2, 1, v2\nv_lshlrev_b32 v2, 4, v2')
    a('s_lshl_b32 s28, s26, 15\ns_lshl_b32 s29, s24, 12\ns_add_u32 s28, s28, s29\ns_lshl_b32 s29, s25, 10\ns_add_u32 s28, s28, s29')
    a('s_add_u32 s28, s28, 0x%x'%L.WT)
    a('s_add_u32 s29, s28, %d'%(144*8192))
    a('s_mov_b32 s42, 0x%x\ns_mov_b32 s43, 0x%x'%(LO,HI))
    a('v_lshlrev_b32 v3, 4, v0')
    a('s_waitcnt vmcnt(0)')
    stamp(a,2)
    a('s_barrier')
    stamp(a,3)
    for r in range(4):
        a('ds_read_b128 v[%d:%d], v1 offset:%d'%(8+4*r,11+4*r,5120*r))
        a('ds_read_b32 v%d, v1 offset:%d'%(72+r,5120*r+16))
        a('ds_read_b128 v[%d:%d], v1 offset:%d'%(24+4*r,27+4*r,5120*r+40960))
        if r==2: a('s_waitcnt lgkmcnt(6)')
        a('ds_read_b32 v%d, v1 offset:%d'%(76+r,5120*r+40960+16))
    a('s_waitcnt lgkmcnt(0)')
    for r in range(4):
        for (b,x) in ((8+4*r,72+r),(24+4*r,76+r)):
            for q in range(4): a('v_alignbit_b32 v%d, v%d, v%d, v2'%(b+q,b+q+1 if q<3 else x,b+q))
    stamp(a,4)
    for t in range(8):
        o=40+4*t
        for r in range(4): a('v_perm_b32 v%d, v%d, v%d, s%d'%(o+r,24+4*r+(t>>1),8+4*r+(t>>1),43 if t&1 else 42))
        sb=28 if t&1 else 29
        a('buffer_store_dwordx4 v[%d:%d], v3, s[12:15], s%d offen'%(o,o+3,sb))
        a('s_add_u32 s%d, s%d, 8192'%(sb,sb))
    stamp(a,5)
    stamp_end(a,0)
    a.label('K1_exit')
    a('s_endpgm')
    return dict(name=name,grid=288,block=576,lds=81920,vgpr=80)
```

```python
T = 2048*576*2
WM = 576*576*2
XDT  = 0
WT   = XDT + T
R    = WT + T
HS   = R + T
Q    = HS + T
G    = Q + T
X1   = G + T
W1R  = X1 + T
W2R  = W1R + WM
CW1R = W2R + WM
W34R = CW1R + WM
PART = W34R + 2*576*4608*2
STAT = PART + 8*T
RS2  = STAT
MEAN = STAT + 8192
SIG  = STAT + 16384
TOK  = STAT + 32768
STAMP= STAT + 65536
WS_USED = STAMP + 8*524288
```
